```python
import torch

def _softmax(x, axis=-1):
    return torch.softmax(x, dim=axis)
def _gelu(x):
    return torch.nn.functional.gelu(x, approximate="tanh")
def _silu(x):
    return torch.nn.functional.silu(x)
def _sigmoid(x):
    return torch.sigmoid(x)
def _layernorm(x, axis=-1, eps=1e-5):
    m = x.mean(dim=axis, keepdim=True)
    v = x.var(dim=axis, keepdim=True, unbiased=False)
    return (x - m) / torch.sqrt(v + eps)
def _scatter_add(tgt, idx, src, axis=0):
    return tgt.clone().index_add_(axis, idx, src)
def _segment_sum(src, seg, n):
    out = torch.zeros((n,) + src.shape[1:], dtype=src.dtype)
    return out.index_add_(0, seg, src)
def _pad(x, pw):
    flat = tuple(v for pair in reversed(pw) for v in pair)
    return torch.nn.functional.pad(x, flat)

kernel_name = 'recurrent_scan__mha_block__mixer_channel_mlp__prompt'

def setup_inputs():

    _w = (lambda a: (lambda t: t.to(torch.bfloat16) if t.is_floating_point() else t)(torch.as_tensor(a)))
    def _A_setup():
        B, S, D, H = 1, 2048, 512, 32
        return {
            "x": _w((lambda *s: torch.randn(*s, dtype=torch.bfloat16) * 0.05)(B, S, D)),
            "wqkv": _w((lambda *s: torch.randn(*s, dtype=torch.bfloat16) * 0.1)(D, 3 * D)),
            "wo": _w((lambda *s: torch.randn(*s, dtype=torch.bfloat16) * 0.05)(D, D)),
        }
    _A_in = _A_setup()

    def _B_setup():
        B, S, D, F = 1, 2048, 512, 1792
        return {
            "x": _w((lambda *s: torch.randn(*s, dtype=torch.bfloat16) * 0.05)(B, S, D)),
            "w1": _w((lambda *s: torch.randn(*s, dtype=torch.bfloat16) * 3.2)(D, F) * (D ** -0.5)),
            "b1": _w((lambda *s: torch.randn(*s, dtype=torch.bfloat16) * 1.6)(F)),
            "w2": _w((lambda *s: torch.randn(*s, dtype=torch.bfloat16) * 0.8)(F, D) * (F ** -0.5)),
            "b2": _w((lambda *s: torch.randn(*s, dtype=torch.bfloat16) * 0.8)(D)),
        }
    _B_in = _B_setup()

    return {
        "A_x": _A_in["x"],
        "A_wqkv": _A_in["wqkv"],
        "A_wo": _A_in["wo"],
        "B_x": _B_in["x"],
        "B_w1": _B_in["w1"],
        "B_b1": _B_in["b1"],
        "B_w2": _B_in["w2"],
        "B_b2": _B_in["b2"],
    }

def reference(A_x, A_wqkv, A_wo, B_x, B_w1, B_b1, B_w2, B_b2):
    def _A_ref(x, wqkv, wo):
        B, S, D = x.shape
        H = 32
        Dh = D // H
        qkv = (lambda x, *d: x.permute(*d))((x @ wqkv).reshape(B, S, 3, H, Dh), 2, 0, 3, 1, 4)
        q, k, v = qkv[0], qkv[1], qkv[2]
        scores = torch.einsum("bhqd,bhkd->bhqk", q, k) * (Dh ** -0.5)
        p = _softmax(scores, axis=-1)
        o = torch.einsum("bhqk,bhkd->bhqd", p, v)
        return (lambda x, *d: x.permute(*d))(o, 0, 2, 1, 3).reshape(B, S, D) @ wo

    def _B_ref(x, w1, b1, w2, b2):
        y = _layernorm(x, axis=-1)
        h = _gelu(torch.einsum("bsd,df->bsf", y, w1) + b1)
        return torch.einsum("bsf,fd->bsd", h, w2) + b2

    x = A_x
    xn = _layernorm(x, axis=-1)
    s = _A_ref(xn, A_wqkv, A_wo)
    g = _silu(_B_ref(xn, B_w1, B_b1, B_w2, B_b2))
    return x + s * g
```

```python
import re

def v(i, n=1):
    return f"v{i}" if n == 1 else f"v[{i}:{i+n-1}]"
def s(i, n=1):
    return f"s{i}" if n == 1 else f"s[{i}:{i+n-1}]"

class Regs:
    def __init__(self, lo, hi):
        self.free = set(range(lo, hi)); self.hi_water = lo; self.names = {}
    def alloc(self, n=1, align=1, name=None):
        if n >= 2 and align == 1: align = 2
        i = 0
        mx = max(self.free) if self.free else -1
        while i + n - 1 <= mx:
            if i % align == 0 and all((i + k) in self.free for k in range(n)):
                for k in range(n): self.free.discard(i + k)
                self.hi_water = max(self.hi_water, i + n)
                if name: self.names[name] = (i, n)
                return i
            i += 1
        raise RuntimeError(f"out of registers allocating {n} ({name})")
    def release(self, i, n=1):
        for k in range(n):
            assert (i + k) not in self.free, f"double free {i+k}"
            self.free.add(i + k)

_REG = re.compile(r"^(-|abs\(|neg\()?([vsa])(\d+)\)?$")
_RNG = re.compile(r"^(-|abs\(|neg\()?([vsa])\[(\d+):(\d+)\]\)?$")
def regs_of(op):
    op = op.strip()
    m = _REG.match(op)
    if m: return {(m.group(2), int(m.group(3)))}
    m = _RNG.match(op)
    if m: return {(m.group(2), i) for i in range(int(m.group(3)), int(m.group(4)) + 1)}
    if op in ("vcc", "vcc_lo", "vcc_hi"): return {("s", "vcc")}
    if op in ("exec", "exec_lo", "exec_hi"): return {("s", "exec")}
    if op == "m0": return {("s", "m0")}
    return set()

TRANS = ("v_exp_f32", "v_log_f32", "v_rcp_f32", "v_rsq_f32", "v_sqrt_f32", "v_sin_f32", "v_cos_f32",
         "v_exp_f16", "v_rcp_f16", "v_rcp_iflag_f32")

class Ins:
    def __init__(self, text):
        self.text = text
        t = text.split(";")[0].strip()
        self.label = None; self.mn = None; self.defs = set(); self.uses = set()
        self.kind = "other"; self.states = 1; self.target = None
        self.srcC = set(); self.srcAB = set(); self.passes = 0; self.store_data = set()
        self.lds_dma = False
        if not t or t.startswith("."):
            self.kind = "dir"; self.states = 0; return
        if t.endswith(":"):
            self.label = t[:-1]; self.kind = "label"; self.states = 0; return
        parts = t.split(None, 1)
        mn = parts[0]; self.mn = mn
        rest = parts[1] if len(parts) > 1 else ""
        ops = []; cur = ""; depth = 0
        for ch in rest:
            if ch in "[(": depth += 1
            if ch in "])": depth -= 1
            if ch == "," and depth == 0: ops.append(cur.strip()); cur = ""
            else: cur += ch
        if cur.strip(): ops.append(cur.strip())
        mods = ""
        if ops:
            sp = ops[-1].split(None, 1)
            ops[-1] = sp[0]
            mods = sp[1] if len(sp) > 1 else ""
        self.ops = ops; self.mods = mods
        R = [regs_of(o) for o in ops]
        base = re.sub(r"_(e32|e64|sdwa|dpp)$", "", mn)
        self.base = base
        if mn.startswith("v_mfma") or mn.startswith("v_smfmac"):
            self.kind = "mfma"
            self.defs = R[0]
            self.srcAB = R[1] | R[2]
            if mn.startswith("v_smfmac"):
                self.srcC = R[0]; self.srcAB |= R[3]
            else:
                self.srcC = R[3]
            self.uses = self.srcAB | self.srcC
            self.passes = 8 if "32x32" in mn else 4
        elif mn.startswith("v_"):
            self.kind = "valu"
            if base in ("v_permlane32_swap_b32", "v_permlane16_swap_b32", "v_swap_b32"):
                self.defs = R[0] | R[1]; self.uses = R[0] | R[1]
            elif base.startswith("v_cmp"):
                self.defs = R[0]; self.uses = set().union(*R[1:])
                if base.startswith("v_cmpx"): self.defs |= {("s", "exec")}
            elif base in ("v_add_co_u32", "v_sub_co_u32", "v_addc_co_u32", "v_subb_co_u32"):
                self.defs = R[0] | R[1]; self.uses = set().union(*R[2:])
            elif base == "v_nop":
                pass
            else:
                self.defs = R[0]; self.uses = set().union(*R[1:]) if len(R) > 1 else set()
                if base in ("v_fmac_f32", "v_dot2c_f32_bf16", "v_pk_fmac_f16", "v_writelane_b32") or "UNUSED_PRESERVE" in mods:
                    self.uses |= R[0]
                if base == "v_cndmask_b32" and len(ops) == 3: self.uses |= {("s", "vcc")}
        elif mn.startswith("ds_"):
            self.kind = "ds"
            if mn.startswith("ds_read") or mn.startswith("ds_bpermute") or mn.startswith("ds_permute") or mn.startswith("ds_swizzle") or "_rtn" in mn:
                self.defs = R[0]; self.uses = set().union(*R[1:])
            else:
                self.uses = set().union(*R)
        elif mn.startswith("buffer_") or mn.startswith("global_"):
            self.kind = "vmem"
            allm = mods.split()
            if mn in ("buffer_wbl2", "buffer_inv"):
                pass
            elif "lds" in allm or mn.startswith("global_load_lds"):
                self.lds_dma = True
                self.uses = set().union(*R) | {("s", "m0")}
            elif "_load" in mn:
                self.defs = R[0]; self.uses = set().union(*R[1:])
            elif "atomic" in mn:
                if "sc0" in allm:
                    self.defs = R[0]; self.uses = set().union(*R[1:]) | (R[0] if mn.startswith("buffer_") else set())
                else:
                    self.uses = set().union(*R)
            else:
                self.uses = set().union(*R)
                if "x4" in mn or "x3" in mn:
                    self.store_data = R[0] if mn.startswith("buffer_") else R[1]
        elif mn.startswith("s_"):
            self.kind = "salu"
            if mn == "s_nop":
                self.states = int(ops[0], 0) + 1
            elif mn.startswith("s_cbranch") or mn == "s_branch":
                self.kind = "branch"; self.target = ops[0]
                if "vcc" in mn: self.uses = {("s", "vcc")}
                if "exec" in mn: self.uses = {("s", "exec")}
            elif mn in ("s_endpgm",):
                self.kind = "end"
            elif mn in ("s_waitcnt", "s_barrier", "s_sleep", "s_setprio") :
                pass
            elif mn.startswith("s_cmp") or mn.startswith("s_bitcmp"):
                self.uses = set().union(*R)
            elif mn.startswith("s_load") or mn.startswith("s_buffer_load") or mn.startswith("s_memtime") or mn.startswith("s_memrealtime"):
                self.kind = "smem"
                self.defs = R[0]; self.uses = set().union(*R[1:]) if len(R) > 1 else set()
            else:
                self.defs = R[0] if R else set(); self.uses = set().union(*R[1:]) if len(R) > 1 else set()
                if "saveexec" in mn: self.defs |= {("s", "exec")}; self.uses |= {("s", "exec")}
        else:
            raise RuntimeError("unknown instruction: " + text)

def isv(rs): return {r for r in rs if r[0] in ("v", "a")}
def iss(rs): return {r for r in rs if r[0] == "s"}

def required(p, c):
    need = 0
    if p.kind == "valu":
        pv = isv(p.defs); ps = iss(p.defs)
        dot = p.base.startswith("v_dot")
        if c.kind == "mfma" and pv & c.uses: need = max(need, 3 if dot else 2)
        if c.kind == "mfma" and ("s", "exec") in p.defs: need = max(need, 4)
        if c.kind == "valu":
            if p.base in TRANS and c.base not in TRANS and pv & c.uses: need = max(need, 1)
            if c.base in ("v_readfirstlane_b32", "v_readlane_b32") and pv & c.uses: need = max(need, 1)
            if c.base.startswith("v_permlane") and pv & c.uses: need = max(need, 2)
            if ("dpp" in c.mn or "row_" in c.mods or "quad_perm" in c.mods) and pv & c.uses: need = max(need, 2)
            if ps & c.uses: need = max(need, 4 if c.base in ("v_readlane_b32", "v_writelane_b32") else 2)
            if ("s", "exec") in p.defs and (c.base.startswith("v_read") or c.base.startswith("v_permlane")): need = max(need, 4)
            if ("sdwa" in p.mn or "op_sel:" in p.mods) and pv & (c.uses | c.defs) and not p.base.startswith("v_pk_"): need = max(need, 1)
            if dot:
                if c.base == p.base:
                    ab = set().union(*[regs_of(o) for o in c.ops[1:3]])
                    if pv & ab: need = max(need, 3)
                elif pv & (c.uses | c.defs): need = max(need, 3)
        if c.kind == "vmem" and ps & c.uses: need = max(need, 5)
        if dot and c.kind in ("vmem", "ds") and pv & c.uses: need = max(need, 3)
        if c.kind in ("salu", "branch", "smem") and ps & c.uses: need = max(need, 1)
    if p.kind == "mfma":
        d = p.defs
        big = {4: 8, 8: 12}[p.passes]
        if c.kind == "mfma":
            if d & c.srcAB: need = max(need, big)
            if d & c.srcC:
                if not (c.srcC == d and c.passes == p.passes): need = max(need, {4: 6, 8: 10}[p.passes])
            elif d & c.defs: need = max(need, 0)
        elif c.kind in ("valu", "vmem", "ds"):
            if d & (c.uses | c.defs): need = max(need, big)
        if c.kind == "valu" and p.srcC & c.defs: need = max(need, {4: 3, 8: 7}[p.passes])
    if p.kind == "salu" and ("s", "m0") in p.defs and c.lds_dma: need = max(need, 1)
    if p.store_data and (p.store_data & c.defs): need = max(need, 2 if c.kind == "valu" else 1)
    return need

class Asm:
    def __init__(self):
        self.L = []
        self.nlab = 0
    def __call__(self, text):
        for line in text.split("\n"):
            if line.strip(): self.L.append(line.strip())
    def label(self, name): self.L.append(name + ":")
    def newlabel(self, p="L"):
        self.nlab += 1; return f"{p}_{self.nlab}"
    def extend(self, other): self.L.extend(other.L if isinstance(other, Asm) else other)

def fix_hazards(lines, verbose=False):
    MAXD = 12
    total = 0
    while True:
        I = [Ins(t) for t in lines]
        lab = {x.label: i for i, x in enumerate(I) if x.label}
        preds = [[] for _ in I]
        for i, x in enumerate(I):
            if x.kind == "branch" and x.target in lab: preds[lab[x.target]].append(i)
            if i + 1 < len(I) and not (x.kind == "end" or x.mn == "s_branch" or x.mn == "s_setpc_b64"):
                preds[i + 1].append(i)
        ins = {}
        for i, c in enumerate(I):
            if c.kind in ("dir", "label"): continue
            worst = 0
            stack = [(p, 0) for p in preds[i]]
            seen = {}
            while stack:
                j, d = stack.pop()
                if d >= MAXD: continue
                if seen.get(j, 99) <= d: continue
                seen[j] = d
                p = I[j]
                need = required(p, c) if p.kind not in ("dir", "label") else 0
                if need > d: worst = max(worst, need - d)
                nd = d + p.states + ins.get(j, 0)
                for q in preds[j]: stack.append((q, nd))
            if worst: ins[i] = worst
        if not ins: break
        out = []
        for i, t in enumerate(lines):
            if i in ins:
                if verbose: print("nop", ins[i], "before", t)
                out.append(f"s_nop {ins[i]-1}")
                total += 1
            out.append(t)
        lines = out
    return lines, total

def kernel_text(name, lines, nvgpr, nsgpr=102):
    acc = (nvgpr + 3) // 4 * 4
    body = "\n".join((l if l.endswith(":") or l.startswith(".") else "    " + l) for l in lines)
    return f""".text
.globl {name}
.p2align 8
.type {name},@function
{name}:
{body}
.section .rodata,"a"
.p2align 6
.amdhsa_kernel {name}
  .amdhsa_next_free_vgpr {nvgpr}
  .amdhsa_next_free_sgpr {nsgpr}
  .amdhsa_accum_offset {acc}
  .amdhsa_group_segment_fixed_size 0
  .amdhsa_kernarg_size 88
  .amdhsa_user_sgpr_count 2
  .amdhsa_user_sgpr_kernarg_segment_ptr 1
  .amdhsa_system_sgpr_workgroup_id_x 1
.end_amdhsa_kernel
"""
```

```python
import sys, struct, math
from asmlib import *

NAME = "recurrent_scan__mha_block__mixer_channel_mlp__prompt"

MB = 1 << 20
WS_QF = 0 * MB
WS_KF = 2 * MB
WS_VF = 4 * MB
WS_OF = 6 * MB
WS_HF = 8 * MB
WS_W2F = 16 * MB
WS_WOF = 18 * MB
WS_G = 19 * MB
WS_FLAG = 24 * MB
WS_SIZE = 25 * MB

def fbits(x): return struct.unpack("<I", struct.pack("<f", x))[0]
def hx(x): return "0x%x" % (x & 0xffffffff)
LOG2E = 1.4426950408889634
QSCALE = 0.25 * LOG2E
GELU_A = -2.0 * math.sqrt(2.0 / math.pi) * LOG2E
GELU_B = GELU_A * 0.044715

class Q:
    def __init__(self, a, name, mx):
        self.a = a; self.name = name; self.ops = []; self.mx = mx
    def add(self, tag): self.ops.append(tag)
    def wait(self, tag, emit=True):
        idx = [i for i, t in enumerate(self.ops) if t == tag]
        if not idx: return None
        n = len(self.ops) - 1 - idx[-1]
        self.ops = self.ops[idx[-1] + 1:]
        n = min(n, self.mx)
        if emit: self.a(f"s_waitcnt {self.name}({n})")
        return n
    def wait_all(self):
        self.ops = []; self.a(f"s_waitcnt {self.name}(0)")

S_X = 4
S_QKV = 8
S_WO = 12
S_W1 = 16
S_B1 = 20
S_W2 = 24
S_B2 = 28
S_OUT = 32
S_WS = 36
S_DBG = 40
S_W = 42
S_RT = 43
S_SLOT = 44
S_XCD = 45
S_IDX = 46
S_RB = 47
S_U = 48
S_T0 = 50
S_C0 = 60
S_XB = 70
S_WB = 71
S_E = 72
S_QB = 73
S_R = 74
S_CG = 75
S_K0 = 76
S_LOOP = 80

def prologue(a, exit_label):
    a(f"s_cmp_ge_u32 s2, 256")
    a(f"s_cbranch_scc1 {exit_label}")
    for (sr, off) in [(S_X, 0), (S_QKV, 8), (S_W1, 32), (S_WS, 80), (S_B1, 40), (S_WO, 16), (S_W2, 48), (S_B2, 56), (S_OUT, 64), (S_DBG, 72)]:
        a(f"s_load_dwordx2 {s(sr,2)}, s[0:1], {off}")
    for (sr, nb) in [(S_X, 2048*512*2), (S_QKV, 512*1536*2), (S_WO, 512*512*2), (S_W1, 512*1792*2), (S_B1, 1792*2),
                     (S_W2, 1792*512*2), (S_B2, 512*2), (S_OUT, 2048*512*2), (S_WS, WS_SIZE)]:
        a(f"s_mov_b32 {s(sr+2)}, {hx(nb)}")
        a(f"s_mov_b32 {s(sr+3)}, 0x20000")
    a(f"v_lshrrev_b32 v1, 6, v0")
    a(f"v_and_b32 v0, 63, v0")
    a(f"v_readfirstlane_b32 {s(S_W)}, v1")
    a(f"s_and_b32 {s(S_XCD)}, s2, 7")
    a(f"s_lshr_b32 {s(S_IDX)}, s2, 3")
    a(f"s_and_b32 {s(S_RT)}, {s(S_W)}, 3")
    a(f"s_lshr_b32 {s(S_SLOT)}, {s(S_W)}, 2")

SLOT = 32768
class P1:
    def __init__(self, a, sc):
        self.a = a; self.sc = sc
        R = self.R = Regs(2, 256)
        self.XF = R.alloc(128, 4)
        self.ACC = [R.alloc(16, 4), R.alloc(16, 4)]
        self.WF = [[R.alloc(4, 4), R.alloc(4, 4)], [R.alloc(4, 4), R.alloc(4, 4)]]
        self.xa = [R.alloc() for _ in range(4)]
        self.wa = [R.alloc() for _ in range(4)]
        self.vx0 = R.alloc(); self.vx1 = R.alloc()
        self.vw0 = R.alloc(); self.vw1 = R.alloc(); self.vw2 = R.alloc(); self.vwh = R.alloc()
        self.ones = R.alloc()
        self.st = R.alloc(4, 4)
        self.bias = [R.alloc() for _ in range(2)]
        self.XS = R.alloc(4, 4)
        self.WSd = R.alloc(4, 4)
        self.r1 = R.alloc(2); self.rH = R.alloc(2)
        self.T = R.alloc(24, 4)
        self.vo = R.alloc()
        self.cA = R.alloc(2)
        self.vscr = R.alloc()
        self.abase = 0

    def setup(self):
        a = self.a; T = self.T
        a(f"s_and_b32 {s(S_T0)}, {s(S_XCD)}, 1")
        a(f"s_lshl_b32 {s(S_T0)}, {s(S_T0)}, 3")
        a(f"s_and_b32 {s(S_T0+1)}, {s(S_IDX)}, 7")
        a(f"s_add_u32 {s(S_RB)}, {s(S_T0)}, {s(S_T0+1)}")
        a(f"s_lshr_b32 {s(S_T0)}, {s(S_XCD)}, 1")
        a(f"s_lshl_b32 {s(S_T0)}, {s(S_T0)}, 1")
        a(f"s_lshr_b32 {s(S_T0+1)}, {s(S_IDX)}, 4")
        a(f"s_add_u32 {s(S_U)}, {s(S_T0)}, {s(S_T0+1)}")
        a(f"s_lshl_b32 {s(S_XB)}, {s(S_W)}, 11")
        a(f"s_lshl_b32 {s(S_WB)}, {s(S_W)}, 10")
        a(f"v_lshrrev_b32 {v(T)}, 3, v0")
        a(f"v_and_b32 {v(T+1)}, 7, v0")
        a(f"v_lshrrev_b32 {v(T+2)}, 4, v0")
        a(f"v_xor_b32 {v(T+3)}, {v(T+1)}, {v(T+2)}")
        a(f"s_lshl_b32 {s(S_T0)}, {s(S_RB)}, 17")
        a(f"s_lshl_b32 {s(S_T0+1)}, {s(S_W)}, 14")
        a(f"s_add_u32 {s(S_T0)}, {s(S_T0)}, {s(S_T0+1)}")
        a(f"v_lshlrev_b32 {v(T+4)}, 10, {v(T)}")
        a(f"v_add_u32 {v(T+4)}, {s(S_T0)}, {v(T+4)}")
        a(f"v_lshl_add_u32 {v(self.vx0)}, {v(T+3)}, 4, {v(T+4)}")
        a(f"v_xor_b32 {v(T+3)}, 4, {v(T+3)}")
        a(f"v_lshl_add_u32 {v(self.vx1)}, {v(T+3)}, 4, {v(T+4)}")
        a(f"v_add_u32 {v(self.vx1)}, {8192-1024}, {v(self.vx1)}")
        a(f"v_and_b32 {v(T+2)}, 1, {v(T+2)}")
        a(f"v_lshlrev_b32 {v(T+2)}, 2, {v(T+2)}")
        a(f"v_xor_b32 {v(T+5)}, {v(T+1)}, {v(T+2)}")
        a(f"v_lshlrev_b32 {v(T+5)}, 4, {v(T+5)}")
        a(f"s_lshl_b32 {s(S_T0)}, {s(S_W)}, 3")
        a(f"v_add_u32 {v(T)}, {s(S_T0)}, {v(T)}")

    def wvoff(self, dst, stride, scol):
        a = self.a; T = self.T
        a(f"v_mul_u32_u24 {v(dst)}, {stride}, {v(T)}")
        a(f"v_add3_u32 {v(dst)}, {v(dst)}, {v(T+5)}, {s(scol)}")

    def read_addrs(self):
        a = self.a; T = self.T
        a(f"s_lshl_b32 {s(S_T0)}, {s(S_SLOT)}, 1")
        a(f"s_xor_b32 {s(S_K0)}, {s(S_RT)}, {s(S_T0)}")
        a(f"v_and_b32 {v(T)}, 31, v0")
        a(f"v_lshrrev_b32 {v(T+1)}, 5, v0")
        a(f"v_bfe_u32 {v(T+2)}, v0, 1, 3")
        a(f"v_xor_b32 {v(T+2)}, {v(T+2)}, {v(T+1)}")
        a(f"s_lshl_b32 {s(S_T0)}, {s(S_K0)}, 1")
        a(f"v_xor_b32 {v(T+2)}, {s(S_T0)}, {v(T+2)}")
        a(f"v_lshlrev_b32 {v(T+2)}, 4, {v(T+2)}")
        a(f"v_lshl_add_u32 {v(T+2)}, {v(T)}, 7, {v(T+2)}")
        a(f"s_lshl_b32 {s(S_T0)}, {s(S_RT)}, 12")
        a(f"v_add_u32 {v(self.xa[0])}, {s(S_T0)}, {v(T+2)}")
        for j in range(1, 4):
            a(f"v_xor_b32 {v(self.xa[j])}, {j<<5}, {v(self.xa[0])}")
        a(f"v_bfe_u32 {v(T+2)}, v0, 2, 2")
        a(f"v_lshl_add_u32 {v(T+3)}, {v(T+1)}, 3, {v(T+2)}")
        a(f"v_lshrrev_b32 {v(T+2)}, 1, {v(T+2)}")
        a(f"v_xor_b32 {v(T+2)}, {s(S_SLOT)}, {v(T+2)}")
        a(f"v_lshlrev_b32 {v(T+2)}, 6, {v(T+2)}")
        a(f"v_lshl_add_u32 {v(T+2)}, {v(T+3)}, 7, {v(T+2)}")
        a(f"v_bfe_u32 {v(T+4)}, v0, 4, 1")
        a(f"v_lshl_add_u32 {v(T+2)}, {v(T+4)}, 5, {v(T+2)}")
        a(f"v_and_b32 {v(T+4)}, 3, v0")
        a(f"v_lshl_add_u32 {v(T+2)}, {v(T+4)}, 3, {v(T+2)}")
        a(f"s_lshl_b32 {s(S_T0)}, {s(S_K0)}, 11")
        a(f"v_add_u32 {v(self.wa[0])}, {s(S_T0)}, {v(T+2)}")
        for j in range(1, 4):
            a(f"v_xor_b32 {v(self.wa[j])}, {j<<11}, {v(self.wa[0])}")
        a(f"v_mov_b32 {v(self.ones)}, 0x3f803f80")
        for i in range(4): a(f"v_mov_b32 {v(self.st+i)}, 0")
        a(f"v_mov_b32 {v(self.cA)}, {hx(fbits(GELU_A))}")
        a(f"s_mov_b32 {s(S_C0)}, {hx(fbits(GELU_B))}")
        a(f"s_mov_b32 {s(S_C0+1)}, {hx(fbits(GELU_B))}")
        a(f"s_mov_b32 {s(S_C0+2)}, 1.0")
        a(f"s_mov_b32 {s(S_C0+3)}, 1.0")
        a(f"s_mov_b32 {s(S_C0+4)}, 0x03020302")
        a(f"s_mov_b32 {s(S_C0+5)}, 0x07060302")
        a(f"s_mov_b32 {s(S_C0+6)}, 0x01000100")
        a(f"v_lshlrev_b32 {v(self.vscr)}, 2, v0")

    def rebase(self, regs, newbase):
        d = newbase - self.abase
        if d:
            for r in regs: self.a(f"v_add_u32 {v(r)}, {hx(d)}, {v(r)}")
            self.abase = newbase

    def dma(self, vm, tag, srd, voff, ldsbase_s, ldsoff, soff, imm=0):
        a = self.a
        if ldsoff is not None:
            a(f"s_add_u32 m0, {s(ldsbase_s)}, {hx(ldsoff)}")
        if soff is not None:
            a(f"s_mov_b32 {s(S_T0+2)}, {hx(soff)}")
        a(f"buffer_load_dwordx4 {v(voff)}, {s(srd,4)}, {s(S_T0+2)} offen" + (f" offset:{imm}" if imm else "") + " lds")
        vm.add(tag)

    def gelu_store(self, acc, vm, ks_sgpr):
        a = self.a; T = self.T
        rH = v(self.rH, 2)
        for half in range(2):
            for p in range(4):
                A = acc + half * 8 + 2 * p
                u = T + 4 + 2 * p; t = T + 12 + 2 * p
                a(f"v_pk_mul_f32 {v(u,2)}, {v(A,2)}, {rH} op_sel_hi:[1,0]")
            for p in range(4):
                u = T + 4 + 2 * p; t = T + 12 + 2 * p
                a(f"v_pk_mul_f32 {v(t,2)}, {v(u,2)}, {v(u,2)}")
            for p in range(4):
                u = T + 4 + 2 * p; t = T + 12 + 2 * p
                a(f"v_pk_fma_f32 {v(t,2)}, {v(t,2)}, {s(S_C0,2)}, {v(self.cA,2)} op_sel_hi:[1,1,0]")
            for p in range(4):
                u = T + 4 + 2 * p; t = T + 12 + 2 * p
                a(f"v_pk_mul_f32 {v(t,2)}, {v(t,2)}, {v(u,2)}")
            for i in range(8): a(f"v_exp_f32 {v(T+12+i)}, {v(T+12+i)}")
            for p in range(4):
                t = T + 12 + 2 * p
                a(f"v_pk_add_f32 {v(t,2)}, {v(t,2)}, {s(S_C0+2,2)}")
            for i in range(8): a(f"v_rcp_f32 {v(T+12+i)}, {v(T+12+i)}")
            for p in range(4):
                u = T + 4 + 2 * p; t = T + 12 + 2 * p
                a(f"v_pk_mul_f32 {v(u,2)}, {v(u,2)}, {v(t,2)}")
            o = T + 20 if half else T
            for p in range(4):
                u = T + 4 + 2 * p
                a(f"v_cvt_pk_bf16_f32 {v(o+p)}, {v(u)}, {v(u+1)}")
            a(f"buffer_store_dwordx4 {v(o,4)}, {v(self.vo)}, {s(S_WS,4)}, {s(ks_sgpr)} offen offset:{half*1024} {self.sc}")
            vm.add("st")

    def wside(self, cs, bias):
        a = self.a; T = self.T; W = self.WSd
        a(f"v_perm_b32 {v(W)}, {v(cs)}, {v(cs)}, {s(S_C0+4)}")
        a(f"v_and_b32 {v(T)}, 0xffff0000, {v(cs)}")
        a(f"v_sub_f32 {v(T)}, {v(cs)}, {v(T)}")
        a(f"v_perm_b32 {v(W+1)}, {v(T)}, {v(T)}, {s(S_C0+4)}")
        if bias is None: a(f"v_mov_b32 {v(W+2)}, 0")
        else: a(f"v_perm_b32 {v(W+2)}, {v(bias)}, {v(bias)}, {s(S_C0+6)}")
        a(f"v_mov_b32 {v(W+3)}, 0")

    def mf(self, acc, wfrag, xfrag, transposed, c=None):
        c = v(acc, 16) if c is None else c
        if transposed: self.a(f"v_mfma_f32_32x32x16_bf16 {v(acc,16)}, {v(wfrag,4)}, {v(xfrag,4)}, {c}")
        else: self.a(f"v_mfma_f32_32x32x16_bf16 {v(acc,16)}, {v(xfrag,4)}, {v(wfrag,4)}, {c}")

    def second_tile(self, acc, addrs, offs_fn, lg, csreg):
        a = self.a
        def rd(sidx):
            c, j = divmod(sidx, 4)
            for u in range(2):
                off = offs_fn(c, u)
                base = off // 65536 * 65536
                self.rebase(addrs, base)
                a(f"ds_read_b64_tr_b16 {v(self.WF[sidx&1][0]+2*u,2)}, {v(addrs[j])} offset:{off-base}")
                lg.add(("w", sidx))
        a(f"v_mov_b32 {v(csreg)}, 0")
        rd(0)
        for sidx in range(32):
            if sidx + 1 < 32: rd(sidx + 1)
            lg.wait(("w", sidx))
            self.mf(acc, self.WF[sidx & 1][0], self.XF + 4 * sidx, True, c=("0" if sidx == 0 else None))
            if sidx % 4 == 0:
                for i in range(4): a(f"v_dot2c_f32_bf16 {v(csreg)}, {v(self.WF[sidx&1][0]+i)}, {v(self.ones)}")

    def cs_exchange(self, csreg, scr, lg, barrier=True):
        a = self.a; T = self.T
        a(f"s_lshl_b32 {s(S_T0)}, {s(S_W)}, 8")
        a(f"s_add_u32 {s(S_T0)}, {s(S_T0)}, {hx(scr)}")
        a(f"v_add_u32 {v(T)}, {s(S_T0)}, {v(self.vscr)}")
        a(f"ds_write_b32 {v(T)}, {v(csreg)}")
        a(f"s_lshl_b32 {s(S_T0)}, {s(S_SLOT)}, 10")
        a(f"s_add_u32 {s(S_T0)}, {s(S_T0)}, {hx(scr)}")
        a(f"v_add_u32 {v(T+1)}, {s(S_T0)}, {v(self.vscr)}")
        lg.wait_all()
        a("s_barrier")
        a(f"ds_read2st64_b32 {v(T+2,2)}, {v(T+1)} offset0:0 offset1:1")
        a(f"ds_read2st64_b32 {v(T+4,2)}, {v(T+1)} offset0:2 offset1:3")
        lg.wait_all()
        a(f"v_add_f32 {v(T+2)}, {v(T+2)}, {v(T+3)}")
        a(f"v_add_f32 {v(T+4)}, {v(T+4)}, {v(T+5)}")
        a(f"v_add_f32 {v(csreg)}, {v(T+2)}, {v(T+4)}")

    def body(self, typ):
        a = self.a; T = self.T; st = self.st
        vm = Q(a, "vmcnt", 63); lg = Q(a, "lgkmcnt", 15)
        self.abase = 0
        a(f"s_mul_i32 {s(S_K0+1)}, {s(S_U)}, 448")
        a(f"s_and_b32 {s(S_T0)}, {s(S_U)}, 1")
        a(f"s_lshl_b32 {s(S_T0+1)}, {s(S_T0)}, 6")
        a(f"s_add_u32 {s(S_K0+2)}, {s(S_K0+1)}, {s(S_T0+1)}")
        a(f"s_xor_b32 {s(S_T0)}, {s(S_T0)}, 1")
        a(f"s_mul_i32 {s(S_T0)}, {s(S_T0)}, 384")
        a(f"s_add_u32 {s(S_K0+1)}, {s(S_K0+1)}, {s(S_T0)}")
        a(f"s_lshl_b32 {s(S_T0+3)}, {s(S_U)}, 7")
        if typ == 0:
            self.wvoff(self.vw0, 3072, S_T0 + 3)
            a(f"v_add_u32 {v(self.vw1)}, 1024, {v(self.vw0)}")
            a(f"s_add_u32 {s(S_K0+3)}, {s(S_K0+2)}, 256")
            U = [(S_QKV, self.vw0, 3072), (S_QKV, self.vw1, 3072)]
        else:
            a(f"s_add_u32 {s(S_T0+3)}, {s(S_T0+3)}, 2048")
            self.wvoff(self.vw0, 3072, S_T0 + 3)
            self.wvoff(self.vw1, 3584, S_K0 + 2)
            a(f"s_add_u32 {s(S_K0+3)}, {s(S_K0+2)}, 128")
            U = [(S_QKV, self.vw0, 3072), (S_W1, self.vw1, 3584)]
        a("s_waitcnt lgkmcnt(0)")
        def issue(g):
            if g < 8:
                sl = (g % 5) * SLOT
                self.dma(vm, g, S_X, self.vx0, S_XB, sl, g * 128)
                self.dma(vm, g, S_X, self.vx1, None, None, None, imm=1024)
                for un in range(2):
                    srd, vo, stride = U[un]
                    self.dma(vm, g, srd, vo, S_WB, sl + 16384 + un * 8192, g * 64 * stride)
            elif g in (8, 9):
                for i in range(4):
                    self.dma(vm, g, S_W1, self.vw2, S_WB, (g - 5) * SLOT + i * 8192, ((g - 8) * 256 + i * 64) * 3584)
            elif g == 10 and typ == 0:
                for i in range(4):
                    self.dma(vm, g, S_W1, self.vwh, S_WB, i * 8192, i * 128 * 3584)
        for g in range(5): issue(g)
        self.wvoff(self.vw2, 3584, S_K0 + 3)
        if typ == 0:
            a(f"v_lshrrev_b32 {v(T)}, 2, v0")
            a(f"s_lshl_b32 {s(S_T0)}, {s(S_W)}, 4")
            a(f"v_add_u32 {v(T)}, {s(S_T0)}, {v(T)}")
            a(f"v_and_b32 {v(T+5)}, 3, v0")
            a(f"v_lshlrev_b32 {v(T+5)}, 4, {v(T+5)}")
            self.wvoff(self.vwh, 3584, S_K0 + 1)
        a(f"v_and_b32 {v(T)}, 31, v0")
        a(f"v_lshlrev_b32 {v(T)}, 1, {v(T)}")
        a(f"s_lshl_b32 {s(S_T0)}, {s(S_SLOT)}, 6")
        if typ == 0:
            a(f"s_add_u32 {s(S_K0+2)}, {s(S_K0+3)}, {s(S_T0)}")
            a(f"s_mov_b32 {s(S_K0+3)}, {s(S_K0+1)}")
        else:
            a(f"s_add_u32 {s(S_K0+2)}, {s(S_K0+2)}, {s(S_T0)}")
            a(f"s_add_u32 {s(S_K0+3)}, {s(S_K0+3)}, {s(S_T0)}")
        for i in range(2):
            a(f"buffer_load_ushort {v(self.bias[i])}, {v(T)}, {s(S_B1,4)}, {s(S_K0+2+i)} offen")
            vm.add("bias")
        self.read_addrs()
        tr = [typ == 0, True]
        def reads(sidx):
            c, j = divmod(sidx, 4)
            sl = (c % 5) * SLOT
            base = sl // 65536 * 65536
            self.rebase(self.xa + self.wa, base)
            a(f"ds_read_b128 {v(self.XF+4*sidx,4)}, {v(self.xa[j])} offset:{sl-base}")
            lg.add(sidx)
            for un in range(2):
                for u in range(2):
                    a(f"ds_read_b64_tr_b16 {v(self.WF[sidx&1][un]+2*u,2)}, {v(self.wa[j])} offset:{sl-base+16384+un*8192+u*512}")
                    lg.add(sidx)
        def compute(sidx):
            j = sidx & 3
            xf = self.XF + 4 * sidx
            for un in range(2):
                self.mf(self.ACC[un], self.WF[sidx & 1][un], xf, tr[un], c=("0" if sidx == 0 else None))
                if j < 2:
                    for i in range(2 * un, 2 * un + 2):
                        a(f"v_dot2c_f32_bf16 {v(st)}, {v(xf+i)}, {v(self.ones)}")
                        a(f"v_dot2c_f32_bf16 {v(st+1)}, {v(xf+i)}, {v(xf+i)}")
                if j == 0:
                    for i in range(4):
                        a(f"v_dot2c_f32_bf16 {v(st+2+un)}, {v(self.WF[sidx&1][un]+i)}, {v(self.ones)}")
        for c in range(8):
            if c > 0: lg.wait(4 * c - 1)
            vm.wait(c)
            a("s_barrier")
            reads(4 * c)
            if c > 0:
                issue(4 + c)
                compute(4 * c - 1)
            for j in range(3):
                reads(4 * c + j + 1)
                lg.wait(4 * c + j)
                compute(4 * c + j)
        lg.wait(31)
        compute(31)
        SCR = SLOT + 16384
        a(f"s_lshl_b32 {s(S_T0)}, {s(S_W)}, 10")
        a(f"s_add_u32 {s(S_T0)}, {s(S_T0)}, {SCR}")
        a(f"v_add_u32 {v(T)}, {s(S_T0)}, {v(self.vscr)}")
        a(f"ds_write2st64_b32 {v(T)}, {v(st)}, {v(st+1)} offset0:0 offset1:1")
        a(f"ds_write2st64_b32 {v(T)}, {v(st+2)}, {v(st+3)} offset0:2 offset1:3")
        a(f"v_xor_b32 {v(T)}, 4096, {v(T)}")
        a(f"s_lshl_b32 {s(S_T0)}, {s(S_SLOT)}, 12")
        a(f"s_add_u32 {s(S_T0)}, {s(S_T0)}, {SCR}")
        a(f"v_add_u32 {v(T+1)}, {s(S_T0)}, {v(self.vscr)}")
        lg.wait_all()
        a("s_barrier")
        a(f"ds_read2st64_b32 {v(T+2,2)}, {v(T)} offset0:0 offset1:1")
        for r in range(4):
            a(f"ds_read2st64_b32 {v(T+4+2*r,2)}, {v(T+1)} offset0:{4*r+2} offset1:{4*r+3}")
        a("s_waitcnt lgkmcnt(4)")
        a(f"v_add_f32 {v(st)}, {v(st)}, {v(T+2)}")
        a(f"v_add_f32 {v(st+1)}, {v(st+1)}, {v(T+3)}")
        a(f"v_mov_b32 {v(T+2)}, {v(st)}")
        a(f"v_mov_b32 {v(T+3)}, {v(st+1)}")
        a(f"v_permlane32_swap_b32 {v(st)}, {v(T+2)}")
        a(f"v_permlane32_swap_b32 {v(st+1)}, {v(T+3)}")
        a(f"v_add_f32 {v(st)}, {v(st)}, {v(T+2)}")
        a(f"v_add_f32 {v(st+1)}, {v(st+1)}, {v(T+3)}")
        a(f"v_mul_f32 {v(st)}, {hx(fbits(-1.0/512))}, {v(st)}")
        a(f"v_mul_f32 {v(T+2)}, {v(st)}, {v(st)}")
        a(f"v_mov_b32 {v(T+3)}, {hx(fbits(1.0/512))}")
        a(f"v_fma_f32 {v(st+1)}, {v(st+1)}, {v(T+3)}, -{v(T+2)}")
        a(f"v_max_f32 {v(st+1)}, 0, {v(st+1)}")
        a(f"v_add_f32 {v(T+2)}, {hx(fbits(1e-5))}, {v(st+1)}")
        a(f"v_rsq_f32 {v(self.r1)}, {v(T+2)}")
        a(f"v_rcp_f32 {v(T+3)}, {v(T+2)}")
        a(f"v_mul_f32 {v(T+3)}, {v(st+1)}, {v(T+3)}")
        a(f"v_add_f32 {v(T+3)}, {hx(fbits(1e-5))}, {v(T+3)}")
        a(f"v_mul_f32 {v(T+3)}, {v(T+3)}, {v(T+2)}")
        a(f"v_rsq_f32 {v(self.rH)}, {v(T+3)}")
        a(f"v_sqrt_f32 {v(T+3)}, {v(T+3)}")
        a(f"v_mul_f32 {v(T+3)}, 0.5, {v(T+3)}")
        X = self.XS
        a(f"v_and_b32 {v(T+2)}, 0xffff0000, {v(st)}")
        a(f"v_sub_f32 {v(T+2)}, {v(st)}, {v(T+2)}")
        a(f"v_perm_b32 {v(X)}, {v(T+2)}, {v(st)}, {s(S_C0+5)}")
        a(f"v_mov_b32 {v(X+1)}, {v(X)}")
        a(f"v_and_b32 {v(T+2)}, 0xffff0000, {v(T+3)}")
        a(f"v_sub_f32 {v(T+2)}, {v(T+3)}, {v(T+2)}")
        a(f"v_perm_b32 {v(X+2)}, {v(T+2)}, {v(T+3)}, {s(S_C0+5)}")
        a(f"v_mov_b32 {v(X+3)}, 0")
        lg.wait_all()
        for i in range(2):
            a(f"v_add_f32 {v(T+4+i)}, {v(T+4+i)}, {v(T+6+i)}")
            a(f"v_add_f32 {v(T+8+i)}, {v(T+8+i)}, {v(T+10+i)}")
            a(f"v_add_f32 {v(st+2+i)}, {v(T+4+i)}, {v(T+8+i)}")
        a(f"s_lshl_b32 {s(S_T0+4)}, {s(S_RB)}, 2")
        a(f"s_add_u32 {s(S_T0+4)}, {s(S_T0+4)}, {s(S_RT)}")
        a(f"s_lshl_b32 {s(S_T0+5)}, {s(S_U)}, 2")
        a(f"s_lshl_b32 {s(S_T0)}, {s(S_SLOT)}, 1")
        a(f"s_add_u32 {s(S_T0+5)}, {s(S_T0+5)}, {s(S_T0)}")
        vm.wait("bias")
        if typ == 0:
            for un in range(2):
                self.wside(st + 2 + un, None)
                self.mf(self.ACC[un], self.WSd, X, True)
            a(f"s_lshl_b32 {s(S_T0)}, {s(S_T0+5)}, 16")
            a(f"s_lshl_b32 {s(S_T0+1)}, {s(S_T0+4)}, 10")
            a(f"s_add_u32 {s(S_T0)}, {s(S_T0)}, {s(S_T0+1)}")
            a(f"s_add_u32 {s(S_T0+1)}, {s(S_T0)}, 65536")
            a(f"v_mul_f32 {v(T+22)}, {hx(fbits(QSCALE))}, {v(self.r1)}")
            a(f"v_and_b32 {v(T)}, 0x33, v0")
            a(f"v_bfe_u32 {v(T+1)}, v0, 2, 1")
            a(f"v_lshl_add_u32 {v(T)}, {v(T+1)}, 3, {v(T)}")
            a(f"v_bfe_u32 {v(T+1)}, v0, 3, 1")
            a(f"v_lshl_add_u32 {v(T)}, {v(T+1)}, 2, {v(T)}")
            a(f"v_lshlrev_b32 {v(T)}, 4, {v(T)}")
            a(f"v_add_u32 {v(T+21)}, {hx(WS_KF)}, {v(T)}")
            a(f"v_lshlrev_b32 {v(self.vo)}, 4, v0")
            for un, rr, vo in ((1, self.r1, T + 21), (0, T + 22, self.vo)):
                acc = self.ACC[un]
                for p in range(8):
                    a(f"v_pk_mul_f32 {v(acc+2*p,2)}, {v(acc+2*p,2)}, {v(rr,2)} op_sel_hi:[1,0]")
                o = T + 4 + 8 * un
                for p in range(8):
                    a(f"v_cvt_pk_bf16_f32 {v(o+p)}, {v(acc+2*p)}, {v(acc+2*p+1)}")
                for hh in range(2):
                    a(f"buffer_store_dwordx4 {v(o+4*hh,4)}, {v(vo)}, {s(S_WS,4)}, {s(S_T0+hh)} offen {self.sc}")
                    vm.add("qkv")
        else:
            self.wside(st + 2, None)
            self.mf(self.ACC[0], self.WSd, X, False)
            W = self.WSd
            a(f"v_mul_f32 {v(T+3)}, 0.5, {v(self.r1)}")
            a(f"v_and_b32 {v(T+2)}, 0xffff0000, {v(T+3)}")
            a(f"v_sub_f32 {v(T+2)}, {v(T+3)}, {v(T+2)}")
            a(f"v_perm_b32 {v(T)}, {v(T+2)}, {v(T+3)}, {s(S_C0+5)}")
            a(f"v_and_b32 {v(T+1)}, 0xffff0000, {v(T+2)}")
            a(f"v_sub_f32 {v(T+1)}, {v(T+2)}, {v(T+1)}")
            a(f"v_lshrrev_b32 {v(T+1)}, 16, {v(T+1)}")
            a(f"v_mov_b32 {v(T+2)}, 0")
            a(f"v_mov_b32 {v(T+3)}, 0")
            a(f"v_mov_b32 {v(T+20)}, {v(self.ones)}")
            a(f"v_mov_b32 {v(T+21)}, {v(self.ones)}")
            a(f"v_mov_b32 {v(T+22)}, 0")
            a(f"v_mov_b32 {v(T+23)}, 0")
            a(f"v_mfma_f32_32x32x16_bf16 {v(T+4,16)}, {v(T,4)}, {v(T+20,4)}, 0")
            self.wside2 = True
            a(f"v_perm_b32 {v(W)}, {v(st+3)}, {v(st+3)}, {s(S_C0+4)}")
            a(f"v_and_b32 {v(W+3)}, 0xffff0000, {v(st+3)}")
            a(f"v_sub_f32 {v(W+3)}, {v(st+3)}, {v(W+3)}")
            a(f"v_perm_b32 {v(W+1)}, {v(W+3)}, {v(W+3)}, {s(S_C0+4)}")
            a(f"v_perm_b32 {v(W+2)}, {v(self.bias[0])}, {v(self.bias[0])}, {s(S_C0+6)}")
            a(f"v_mov_b32 {v(W+3)}, 0")
            self.mf(self.ACC[1], W, X, True)
            a(f"v_bfe_u32 {v(self.vo)}, v0, 4, 1")
            a(f"v_lshlrev_b32 {v(self.vo)}, 16, {v(self.vo)}")
            a(f"v_lshrrev_b32 {v(T)}, 5, v0")
            a(f"v_lshl_add_u32 {v(self.vo)}, {v(T)}, 8, {v(self.vo)}")
            a(f"v_and_b32 {v(T)}, 15, v0")
            a(f"v_lshl_add_u32 {v(self.vo)}, {v(T)}, 4, {v(self.vo)}")
            a(f"s_lshl_b32 {s(S_T0)}, {s(S_T0+5)}, 16")
            a(f"s_lshl_b32 {s(S_T0+1)}, {s(S_T0+4)}, 10")
            a(f"s_add_u32 {s(S_T0)}, {s(S_T0)}, {s(S_T0+1)}")
            a(f"s_add_u32 {s(S_T0)}, {s(S_T0)}, {hx(WS_VF)}")
            acc = self.ACC[0]
            for p in range(8):
                a(f"v_pk_mul_f32 {v(acc+2*p,2)}, {v(acc+2*p,2)}, {v(T+4+2*p,2)}")
            for p in range(8):
                a(f"v_cvt_pk_bf16_f32 {v(T+4+p)}, {v(acc+2*p)}, {v(acc+2*p+1)}")
            for m in range(2):
                a(f"buffer_store_dwordx4 {v(T+4+4*m,4)}, {v(self.vo)}, {s(S_WS,4)}, {s(S_T0)} offen offset:{m*512} {self.sc}")
                vm.add("qkv")
            a(f"v_lshlrev_b32 {v(self.vo)}, 4, v0")
        a(f"s_mul_i32 {s(S_T0)}, {s(S_T0+4)}, {112*1024}")
        a(f"s_add_u32 {s(S_T0)}, {s(S_T0)}, {hx(WS_HF)}")
        for i in range(2):
            a(f"s_lshl_b32 {s(S_K0+2+i)}, {s(S_K0+2+i)}, 5")
            a(f"s_add_u32 {s(S_K0+2+i)}, {s(S_K0+2+i)}, {s(S_T0)}")
        if typ == 1:
            self.gelu_store(self.ACC[1], vm, S_K0 + 2)
        self.relayout_issue(vm)
        vm.wait(9)
        a("s_barrier")
        self.second_tile(self.ACC[0], self.wa, lambda c, u: (3 + (c >> 2)) * SLOT + (c & 3) * 8192 + u * 512, lg, st + 2)
        if typ == 0: vm.wait(10)
        self.cs_exchange(st + 2, 2 * SLOT, lg)
        b = self.bias[0] if typ == 0 else self.bias[1]
        self.wside(st + 2, b)
        self.mf(self.ACC[0], self.WSd, X, True)
        self.gelu_store(self.ACC[0], vm, S_K0 + 2 + typ)
        self.relayout_finish(vm, lg)
        if typ == 0:
            Lskip = a.newlabel("L_nohalf"); Ljoin = a.newlabel("L_halfjoin")
            a(f"s_cmp_lg_u32 {s(S_SLOT)}, 0")
            a(f"s_cbranch_scc1 {Lskip}")
            wh = self.xa
            a(f"v_lshrrev_b32 {v(T+1)}, 5, v0")
            a(f"v_bfe_u32 {v(T+2)}, v0, 2, 2")
            a(f"v_lshl_add_u32 {v(T+2)}, {v(T+1)}, 3, {v(T+2)}")
            a(f"v_lshlrev_b32 {v(T+2)}, 6, {v(T+2)}")
            a(f"v_bfe_u32 {v(T+4)}, v0, 4, 1")
            a(f"v_lshl_add_u32 {v(T+2)}, {v(T+4)}, 5, {v(T+2)}")
            a(f"v_and_b32 {v(T+4)}, 3, v0")
            a(f"v_lshl_add_u32 {v(T+2)}, {v(T+4)}, 3, {v(T+2)}")
            a(f"s_lshl_b32 {s(S_T0)}, {s(S_K0)}, 10")
            a(f"v_add_u32 {v(wh[0])}, {s(S_T0)}, {v(T+2)}")
            for j in range(1, 4):
                a(f"v_xor_b32 {v(wh[j])}, {j<<10}, {v(wh[0])}")
            self.abase = 0
            self.second_tile(self.ACC[1], wh, lambda c, u: c * 4096 + u * 256, lg, st + 3)
            self.cs_exchange(st + 3, 2 * SLOT + 4096, lg)
            self.wside(st + 3, self.bias[1])
            self.mf(self.ACC[1], self.WSd, X, True)
            self.gelu_store(self.ACC[1], vm, S_K0 + 3)
            a(f"s_branch {Ljoin}")
            a.label(Lskip)
            a("s_barrier")
            a.label(Ljoin)

    def relayout_issue(self, vm):
        a = self.a; T = self.T
        self.Lrl = a.newlabel("L_rl")
        a(f"s_lshl_b32 {s(S_T0)}, {s(S_W)}, 8")
        a(f"s_add_u32 {s(S_LOOP)}, {s(S_T0)}, s2")
        a(f"s_cmp_ge_u32 {s(S_LOOP)}, 1152")
        a(f"s_cbranch_scc1 {self.Lrl}")
        a(f"v_lshrrev_b32 {v(T)}, 3, v0")
        a(f"v_and_b32 {v(T+1)}, 7, v0")
        a(f"v_bfe_u32 {v(T+2)}, v0, 4, 1")
        a(f"v_lshlrev_b32 {v(T+2)}, 2, {v(T+2)}")
        a(f"v_xor_b32 {v(T+1)}, {v(T+1)}, {v(T+2)}")
        a(f"v_lshlrev_b32 {v(T+1)}, 4, {v(T+1)}")
        a(f"v_lshl_add_u32 {v(T)}, {v(T)}, 10, {v(T+1)}")
        a(f"v_add_u32 {v(T+1)}, {8192-1024}, {v(T)}")
        a(f"s_add_u32 m0, {s(S_XB)}, {SLOT}")
        Lwo = a.newlabel("L_wo"); Lj = a.newlabel("L_rlj")
        a(f"s_and_b32 {s(S_T0+1)}, {s(S_LOOP)}, 7")
        a(f"s_lshl_b32 {s(S_T0+1)}, {s(S_T0+1)}, 7")
        a(f"s_cmp_ge_u32 {s(S_LOOP)}, 896")
        a(f"s_cbranch_scc1 {Lwo}")
        a(f"s_lshr_b32 {s(S_T0)}, {s(S_LOOP)}, 3")
        a(f"s_lshl_b32 {s(S_T0)}, {s(S_T0)}, 14")
        a(f"s_add_u32 {s(S_T0)}, {s(S_T0)}, {s(S_T0+1)}")
        a(f"buffer_load_dwordx4 {v(T)}, {s(S_W2,4)}, {s(S_T0)} offen lds")
        a(f"buffer_load_dwordx4 {v(T+1)}, {s(S_W2,4)}, {s(S_T0)} offen offset:1024 lds")
        a(f"s_branch {Lj}")
        a.label(Lwo)
        a(f"s_sub_u32 {s(S_T0)}, {s(S_LOOP)}, 896")
        a(f"s_lshr_b32 {s(S_T0)}, {s(S_T0)}, 3")
        a(f"s_lshl_b32 {s(S_T0)}, {s(S_T0)}, 14")
        a(f"s_add_u32 {s(S_T0)}, {s(S_T0)}, {s(S_T0+1)}")
        a(f"buffer_load_dwordx4 {v(T)}, {s(S_WO,4)}, {s(S_T0)} offen lds")
        a(f"buffer_load_dwordx4 {v(T+1)}, {s(S_WO,4)}, {s(S_T0)} offen offset:1024 lds")
        a.label(Lj)
        a.label(self.Lrl)

    def relayout_finish(self, vm, lg):
        a = self.a; T = self.T
        L = a.newlabel("L_rlf")
        a(f"s_cmp_ge_u32 {s(S_LOOP)}, 1152")
        a(f"s_cbranch_scc1 {L}")
        a(f"v_lshrrev_b32 {v(T+1)}, 5, v0")
        a(f"v_bfe_u32 {v(T+2)}, v0, 2, 2")
        a(f"v_lshl_add_u32 {v(T+3)}, {v(T+1)}, 2, {v(T+2)}")
        a(f"v_lshrrev_b32 {v(T+2)}, 1, {v(T+2)}")
        a(f"v_lshlrev_b32 {v(T+2)}, 6, {v(T+2)}")
        a(f"v_lshl_add_u32 {v(T+2)}, {v(T+3)}, 7, {v(T+2)}")
        a(f"v_bfe_u32 {v(T+4)}, v0, 4, 1")
        a(f"v_lshl_add_u32 {v(T+2)}, {v(T+4)}, 5, {v(T+2)}")
        a(f"v_and_b32 {v(T+4)}, 3, v0")
        a(f"v_lshl_add_u32 {v(T+2)}, {v(T+4)}, 3, {v(T+2)}")
        a(f"v_add_u32 {v(T+2)}, {s(S_XB)}, {v(T+2)}")
        a(f"v_xor_b32 {v(T+3)}, 64, {v(T+2)}")
        a("s_waitcnt vmcnt(0)")
        for ct in range(2):
            for u in range(2):
                a(f"ds_read_b64_tr_b16 {v(T+4+4*ct+2*u,2)}, {v(T+2+ct)} offset:{SLOT+u*1024}")
        a(f"s_lshl_b32 {s(S_T0)}, {s(S_LOOP)}, 11")
        a(f"s_add_u32 {s(S_T0+1)}, {s(S_T0)}, {hx(WS_WOF - 896*2048)}")
        a(f"s_add_u32 {s(S_T0)}, {s(S_T0)}, {hx(WS_W2F)}")
        a(f"s_cmp_ge_u32 {s(S_LOOP)}, 896")
        a(f"s_cselect_b32 {s(S_T0)}, {s(S_T0+1)}, {s(S_T0)}")
        a("s_waitcnt lgkmcnt(0)")
        for ct in range(2):
            a(f"buffer_store_dwordx4 {v(T+4+4*ct,4)}, {v(self.vo)}, {s(S_WS,4)}, {s(S_T0)} offen offset:{ct*1024} {self.sc}")
        a.label(L)
        vm.ops = []

def phase1(a, sc):
    p = P1(a, sc)
    p.setup()
    LB = a.newlabel("L_typeB"); LE = a.newlabel("L_p1end")
    a(f"s_bitcmp1_b32 {s(S_IDX)}, 3")
    a(f"s_cbranch_scc1 {LB}")
    p.body(0)
    a(f"s_branch {LE}")
    a.label(LB)
    p.body(1)
    a.label(LE)
    return p


LDS_V = 65536
LDS_ONES = 131072
LDS_O = 131072
class P2:
    def __init__(self, a, sc_st, sc_ld):
        self.a = a; self.sc_st = sc_st; self.sc_ld = sc_ld
        R = self.R = Regs(2, 256)
        self.S = [R.alloc(16, 4), R.alloc(16, 4)]
        self.Cm = R.alloc(16, 4)
        self.O = R.alloc(16, 4)
        self.G = R.alloc(64, 4)
        self.WO = R.alloc(64, 4)
        self.W2 = R.alloc(16, 4)
        self.H = [R.alloc(4, 4), R.alloc(4, 4)]
        self.Qf = R.alloc(4, 4); self.Kf = R.alloc(4, 4)
        self.V0 = R.alloc(4, 4); self.V1 = R.alloc(4, 4)
        self.X = R.alloc(4, 4); self.B2 = R.alloc(4, 4)
        self.l16 = R.alloc(); self.ka = R.alloc(); self.va = R.alloc(); self.vinc = R.alloc(); self.idx = R.alloc()
        self.vrow = R.alloc()
        self.T = R.alloc(4, 4)

    def ids(self):
        a = self.a
        a(f"s_lshr_b32 {s(S_CG)}, {s(S_IDX)}, 3")
        a(f"s_lshl_b32 {s(S_E)}, {s(S_XCD)}, 2")
        a(f"s_add_u32 {s(S_E)}, {s(S_E)}, {s(S_CG)}")
        a(f"s_and_b32 {s(S_QB)}, {s(S_IDX)}, 7")
        a(f"s_lshl_b32 {s(S_R)}, {s(S_QB)}, 3")
        a(f"s_add_u32 {s(S_R)}, {s(S_R)}, {s(S_XCD)}")
        a(f"v_lshlrev_b32 {v(self.l16)}, 4, v0")
        T = self.T
        a(f"v_lshrrev_b32 {v(T)}, 4, v0")
        a(f"v_lshlrev_b32 {v(T)}, 10, {v(T)}")
        a(f"v_and_b32 {v(T+1)}, 15, v0")
        a(f"v_lshl_add_u32 {v(T)}, {v(T+1)}, 4, {v(T)}")
        a(f"s_lshl_b32 {s(S_T0)}, {s(S_R)}, 15")
        a(f"s_lshl_b32 {s(S_T0+1)}, {s(S_W)}, 12")
        a(f"s_add_u32 {s(S_T0)}, {s(S_T0)}, {s(S_T0+1)}")
        a(f"s_lshl_b32 {s(S_T0+1)}, {s(S_CG)}, 8")
        a(f"s_add_u32 {s(S_T0)}, {s(S_T0)}, {s(S_T0+1)}")
        a(f"v_add_u32 {v(self.vrow)}, {s(S_T0)}, {v(T)}")

    def kv_issue(self):
        a = self.a
        a(f"s_lshl_b32 {s(S_T0)}, {s(S_E)}, 16")
        a(f"s_lshl_b32 {s(S_T0+1)}, {s(S_W)}, 10")
        a(f"s_add_u32 {s(S_T0+2)}, {s(S_T0)}, {s(S_T0+1)}")
        a(f"s_lshl_b32 {s(S_T0+3)}, {s(S_QB)}, 13")
        a(f"s_add_u32 {s(S_T0+3)}, {s(S_T0+3)}, {s(S_T0+2)}")
        a(f"buffer_load_dwordx4 {v(self.Qf,4)}, {v(self.l16)}, {s(S_WS,4)}, {s(S_T0+3)} offen {self.sc_ld}")
        a(f"s_add_u32 {s(S_T0+3)}, {s(S_T0+2)}, {hx(WS_KF)}")
        a(f"s_add_u32 {s(S_T0+4)}, {s(S_T0+2)}, {hx(WS_VF)}")
        for c in range(8):
            a(f"s_add_u32 m0, {s(S_T0+1)}, {c*8192}")
            if c: a(f"s_add_u32 {s(S_T0+3)}, {s(S_T0+3)}, 8192")
            else: a("s_nop 0")
            a(f"buffer_load_dwordx4 {v(self.l16)}, {s(S_WS,4)}, {s(S_T0+3)} offen lds {self.sc_ld}")
            a(f"s_add_u32 m0, {s(S_T0+1)}, {LDS_V+c*8192}")
            if c: a(f"s_add_u32 {s(S_T0+4)}, {s(S_T0+4)}, 8192")
            else: a("s_nop 0")
            a(f"buffer_load_dwordx4 {v(self.l16)}, {s(S_WS,4)}, {s(S_T0+4)} offen lds {self.sc_ld}")

    def setup(self):
        a = self.a; T = self.T
        a(f"s_lshl_b32 {s(S_T0)}, {s(S_W)}, 10")
        a(f"s_add_u32 {s(S_T0)}, {s(S_T0)}, {LDS_ONES}")
        a(f"v_add_u32 {v(self.ka)}, {s(S_T0)}, {v(self.l16)}")
        for i in range(4): a(f"v_mov_b32 {v(T+i)}, 0x3f803f80")
        a(f"ds_write_b128 {v(self.ka)}, {v(T,4)}")
        a(f"v_mov_b32 {v(self.ka)}, {v(self.l16)}")
        a(f"v_mov_b32 {v(self.idx)}, 0xdddddddd")
        a(f"v_and_b32 {v(T)}, 31, v0")
        a(f"v_lshrrev_b32 {v(T+1)}, 5, v0")
        a(f"v_lshlrev_b32 {v(T+1)}, 8, {v(T+1)}")
        a(f"v_lshl_add_u32 {v(T+1)}, {v(T)}, 4, {v(T+1)}")
        a(f"v_add_u32 {v(T+1)}, {LDS_V}, {v(T+1)}")
        a(f"v_subrev_u32 {v(T+2)}, 20, {v(T)}")
        a(f"v_cmp_gt_u32 vcc, 8, {v(T+2)}")
        a(f"v_mov_b32 {v(T+2)}, {LDS_ONES}")
        a(f"v_mov_b32 {v(T+3)}, {LDS_ONES+64}")
        a(f"v_cndmask_b32 {v(T+2)}, {v(T+2)}, {v(T+3)}, vcc")
        a(f"v_cmp_gt_u32 vcc, 16, {v(T)}")
        a(f"v_mov_b32 {v(T+3)}, 4096")
        a(f"v_cndmask_b32 {v(self.va)}, {v(T+2)}, {v(T+1)}, vcc")
        a(f"v_cndmask_b32 {v(self.vinc)}, 0, {v(T+3)}, vcc")
        for i in range(16): a(f"v_mov_b32 {v(self.O+i)}, 0")
        for i in range(64): a(f"v_mov_b32 {v(self.G+i)}, 0")
        a(f"s_mul_i32 {s(S_K0)}, {s(S_R)}, {112*1024}")
        a(f"s_mul_i32 {s(S_T0)}, {s(S_W)}, {14*1024}")
        a(f"s_add_u32 {s(S_K0)}, {s(S_K0)}, {s(S_T0)}")
        a(f"s_add_u32 {s(S_K0)}, {s(S_K0)}, {hx(WS_HF)}")
        a(f"s_mul_i32 {s(S_K0+1)}, {s(S_W)}, {14*16384}")
        a(f"s_lshl_b32 {s(S_T0)}, {s(S_CG)}, 12")
        a(f"s_add_u32 {s(S_K0+1)}, {s(S_K0+1)}, {s(S_T0)}")
        a(f"s_add_u32 {s(S_K0+1)}, {s(S_K0+1)}, {hx(WS_W2F)}")
        a(f"s_lshl_b32 {s(S_K0+2)}, {s(S_SLOT)}, 18")
        a(f"s_add_u32 {s(S_K0+2)}, {s(S_K0+2)}, {s(S_T0)}")
        a(f"s_lshl_b32 {s(S_T0)}, {s(S_RT)}, 10")
        a(f"s_add_u32 {s(S_K0+2)}, {s(S_K0+2)}, {s(S_T0)}")
        a(f"s_add_u32 {s(S_K0+2)}, {s(S_K0+2)}, {hx(WS_WOF)}")

    def smf(self, vf, p):
        self.a(f"v_smfmac_f32_32x32x32_bf16 {v(self.O,16)}, {v(vf,4)}, {v(p,8)}, {v(self.idx)}")

    def tile(self, g, par, first=False, gwork=None):
        a = self.a
        c = self.S[par]; n = self.S[par ^ 1]
        E = lambda i: a(f"v_exp_f32 {v(c+i)}, {v(c+i)}")
        E(0); E(1)
        if not first:
            a("s_waitcnt lgkmcnt(2)")
            self.smf(self.V1, n + 8)
        a(f"ds_read_b128 {v(self.V1,4)}, {v(self.va)} offset:{(2*g+1)*512}")
        for i in range(2, 6): E(i)
        a("s_waitcnt lgkmcnt(2)")
        a(f"v_mfma_f32_32x32x16_bf16 {v(n,16)}, {v(self.Kf,4)}, {v(self.Qf,4)}, {v(self.Cm,16)}")
        a(f"ds_read_b128 {v(self.Kf,4)}, {v(self.ka)} offset:{(g+2)*1024}")
        for i in range(6, 10): E(i)
        a("s_waitcnt lgkmcnt(2)")
        self.smf(self.V0, c)
        a(f"ds_read_b128 {v(self.V0,4)}, {v(self.va)} offset:{(2*g+2)*512}")
        for i in range(10, 14): E(i)
        if gwork: gwork()
        E(14); E(15)
        if g == 3:
            a(f"v_add_u32 {v(self.ka)}, 4096, {v(self.ka)}")
            a(f"v_add_u32 {v(self.va)}, {v(self.vinc)}, {v(self.va)}")

    def gload_w(self, ct):
        self.a(f"buffer_load_dwordx4 {v(self.W2+4*ct,4)}, {v(self.l16)}, {s(S_WS,4)}, {s(S_K0+1)} offen offset:{ct*1024} {self.sc_ld}")
    def gload_h(self, b):
        self.a(f"buffer_load_dwordx4 {v(self.H[b],4)}, {v(self.l16)}, {s(S_WS,4)}, {s(S_K0)} offen {self.sc_ld}")
        self.a(f"s_add_u32 {s(S_K0)}, {s(S_K0)}, 1024")
    def wo_load(self, i):
        self.a(f"buffer_load_dwordx4 {v(self.WO+4*i,4)}, {v(self.l16)}, {s(S_WS,4)}, {s(S_K0+2)} offen {self.sc_ld}")
        self.a(f"s_add_u32 {s(S_K0+2)}, {s(S_K0+2)}, 16384")

    def rowmax(self, src, dst):
        a = self.a; T = self.T
        a(f"v_max3_f32 {v(dst)}, {v(src)}, {v(src+1)}, {v(dst)}")
        for i in range(1, 8): a(f"v_max3_f32 {v(dst)}, {v(src+2*i)}, {v(src+2*i+1)}, {v(dst)}")

    def set_cm(self, m):
        a = self.a; T = self.T
        a(f"v_mov_b32 {v(T+1)}, {v(m)}")
        a(f"v_permlane32_swap_b32 {v(m)}, {v(T+1)}")
        a(f"v_max_f32 {v(m)}, {v(m)}, {v(T+1)}")
        a(f"v_sub_f32 {v(self.Cm)}, 0, {v(m)}")
        for i in range(1, 16): a(f"v_mov_b32 {v(self.Cm+i)}, {v(self.Cm)}")

    def attention(self, gate=None, with_wo=False):
        a = self.a; T = self.T
        a("s_waitcnt vmcnt(12) lgkmcnt(0)")
        a("s_barrier")
        a(f"ds_read_b128 {v(self.Kf,4)}, {v(self.ka)}")
        a(f"ds_read_b128 {v(self.T,4)}, {v(self.ka)} offset:1024") if False else None
        a(f"v_mov_b32 {v(T)}, 0xff800000")
        a("s_waitcnt lgkmcnt(0)")
        a(f"v_mfma_f32_32x32x16_bf16 {v(self.S[1],16)}, {v(self.Kf,4)}, {v(self.Qf,4)}, 0")
        self.rowmax(self.S[1], T)
        self.set_cm(T)
        a(f"v_mfma_f32_32x32x16_bf16 {v(self.S[0],16)}, {v(self.Kf,4)}, {v(self.Qf,4)}, {v(self.Cm,16)}")
        a(f"ds_read_b128 {v(self.Kf,4)}, {v(self.ka)} offset:1024")
        a(f"ds_read_b128 {v(self.V0,4)}, {v(self.va)}")
        for g in range(4): self.tile(g, g & 1, first=(g == 0))
        if gate: gate()
        def ld(g):
            def f():
                if g == 0: self.gload_h(0)
                self.gload_w(g)
                if g == 3:
                    self.gload_h(1)
                    a(f"s_add_u32 {s(S_K0+1)}, {s(S_K0+1)}, 16384")
            return f
        for g in range(4): self.tile(g, g & 1, gwork=ld(g))
        a("s_waitcnt vmcnt(6)")
        a("s_barrier")
        nx = 1 if with_wo else 0
        def gw(g, b, zero=False, wo=None):
            def f():
                a(f"s_waitcnt vmcnt({4+nx})")
                acc = self.G + 16 * g
                a(f"v_mfma_f32_32x32x16_bf16 {v(acc,16)}, {v(self.W2+4*g,4)}, {v(self.H[b],4)}, " + ("0" if zero else v(acc, 16)))
                self.gload_w(g)
                if g == 3:
                    self.gload_h(b)
                    a(f"s_add_u32 {s(S_K0+1)}, {s(S_K0+1)}, 16384")
                    if wo is not None: self.wo_load(wo)
            return f
        if not with_wo:
            a(f"s_mov_b32 {s(S_LOOP)}, 7")
            L = a.newlabel("L_attn")
            a(".p2align 6")
            a.label(L)
            for b in range(2):
                for g in range(4): self.tile(g, g & 1, gwork=gw(g, b))
            a(f"s_sub_u32 {s(S_LOOP)}, {s(S_LOOP)}, 1")
            a(f"s_cmp_lg_u32 {s(S_LOOP)}, 0")
            a(f"s_cbranch_scc1 {L}")
        else:
            raise NotImplementedError
        a("s_waitcnt lgkmcnt(2)")
        self.smf(self.V1, self.S[1] + 8)
        Lok = a.newlabel("L_ok")
        O = self.O
        a(f"v_max3_f32 {v(T)}, abs({v(O)}), abs({v(O+1)}), {v(O+8)}")
        for i in range(1, 4): a(f"v_max3_f32 {v(T)}, abs({v(O+2*i)}), abs({v(O+2*i+1)}), {v(T)}")
        a(f"v_cmp_nle_f32 vcc, {v(O+8)}, {s(S_C0)}")
        a(f"v_cmp_nle_f32 {s(S_T0,2)}, {v(T)}, {s(S_C0+1)}")
        a(f"s_or_b64 vcc, vcc, {s(S_T0,2)}")
        a(f"s_cbranch_vccz {Lok}")
        self.fallback()
        a.label(Lok)
        a(f"v_rcp_f32 {v(T)}, {v(O+8)}")
        a(f"s_lshl_b32 {s(S_T0)}, {s(S_QB)}, 3")
        a(f"s_add_u32 {s(S_T0)}, {s(S_T0)}, {s(S_W)}")
        a(f"s_lshl_b32 {s(S_T0)}, {s(S_T0)}, 5")
        a(f"s_add_u32 {s(S_T0)}, {s(S_T0)}, {s(S_E)}")
        a(f"s_lshl_b32 {s(S_T0)}, {s(S_T0)}, 10")
        a(f"s_add_u32 {s(S_T0)}, {s(S_T0)}, {hx(WS_OF)}")
        for p in range(4): a(f"v_pk_mul_f32 {v(O+2*p,2)}, {v(O+2*p,2)}, {v(T,2)} op_sel_hi:[1,0]")
        for p in range(4): a(f"v_cvt_pk_bf16_f32 {v(O+8+p)}, {v(O+2*p)}, {v(O+2*p+1)}")
        a(f"buffer_store_dwordx4 {v(O+8,4)}, {v(self.l16)}, {s(S_WS,4)}, {s(S_T0)} offen {self.sc_st}")

    def fallback(self):
        a = self.a; T = self.T
        c = self.S[0]
        a("s_waitcnt lgkmcnt(0)")
        a(f"v_mov_b32 {v(self.ka)}, {v(self.l16)}")
        a(f"v_mov_b32 {v(T)}, 0xff800000")
        a(f"s_mov_b32 {s(S_LOOP)}, 64")
        L1 = a.newlabel("L_fb1")
        a.label(L1)
        a(f"ds_read_b128 {v(self.Kf,4)}, {v(self.ka)}")
        a(f"v_add_u32 {v(self.ka)}, 1024, {v(self.ka)}")
        a("s_waitcnt lgkmcnt(0)")
        a(f"v_mfma_f32_32x32x16_bf16 {v(c,16)}, {v(self.Kf,4)}, {v(self.Qf,4)}, 0")
        self.rowmax(c, T)
        a(f"s_sub_u32 {s(S_LOOP)}, {s(S_LOOP)}, 1")
        a(f"s_cmp_lg_u32 {s(S_LOOP)}, 0")
        a(f"s_cbranch_scc1 {L1}")
        self.set_cm(T)
        for i in range(16): a(f"v_mov_b32 {v(self.O+i)}, 0")
        a(f"v_mov_b32 {v(self.ka)}, {v(self.l16)}")
        a(f"v_lshlrev_b32 {v(T)}, 4, {v(self.vinc)}")
        a(f"v_sub_u32 {v(self.va)}, {v(self.va)}, {v(T)}")
        a(f"v_lshrrev_b32 {v(T)}, 2, {v(self.vinc)}")
        a(f"s_mov_b32 {s(S_LOOP)}, 64")
        L2 = a.newlabel("L_fb2")
        a.label(L2)
        a(f"ds_read_b128 {v(self.Kf,4)}, {v(self.ka)}")
        a(f"ds_read_b128 {v(self.V0,4)}, {v(self.va)}")
        a(f"ds_read_b128 {v(self.V1,4)}, {v(self.va)} offset:512")
        a(f"v_add_u32 {v(self.ka)}, 1024, {v(self.ka)}")
        a(f"v_add_u32 {v(self.va)}, {v(T)}, {v(self.va)}")
        a("s_waitcnt lgkmcnt(0)")
        a(f"v_mfma_f32_32x32x16_bf16 {v(c,16)}, {v(self.Kf,4)}, {v(self.Qf,4)}, {v(self.Cm,16)}")
        for i in range(16): a(f"v_exp_f32 {v(c+i)}, {v(c+i)}")
        self.smf(self.V0, c)
        self.smf(self.V1, c + 8)
        a(f"s_sub_u32 {s(S_LOOP)}, {s(S_LOOP)}, 1")
        a(f"s_cmp_lg_u32 {s(S_LOOP)}, 0")
        a(f"s_cbranch_scc1 {L2}")

    def tile_write(self, acc, nct, lds_base_s):
        a = self.a
        A = self.S[0]
        a(f"v_and_b32 {v(A)}, 31, v0")
        a(f"v_lshrrev_b32 {v(A+1)}, 5, v0")
        a(f"v_and_b32 {v(A+2)}, 7, v0")
        a(f"v_xor_b32 {v(A+1)}, {v(A+1)}, {v(A+2)}")
        a(f"v_lshlrev_b32 {v(A+1)}, 4, {v(A+1)}")
        a(f"v_lshl_add_u32 {v(A)}, {v(A)}, 9, {v(A+1)}")
        a(f"v_add_u32 {v(A)}, {s(lds_base_s)}, {v(A)}")
        for g in range(1, 4): a(f"v_xor_b32 {v(A+g)}, {g<<5}, {v(A)}")
        for ct in range(nct):
            for g in range(4):
                a(f"ds_write_b128 {v(A+g)}, {v(acc+16*ct+4*g,4)} offset:{ct*128}")

    def rm_addr(self, A):
        a = self.a
        a(f"v_lshrrev_b32 {v(A)}, 4, v0")
        a(f"s_lshl_b32 {s(S_T0)}, {s(S_W)}, 2")
        a(f"v_add_u32 {v(A)}, {s(S_T0)}, {v(A)}")
        a(f"v_and_b32 {v(A+1)}, 15, v0")
        a(f"v_lshlrev_b32 {v(A+1)}, 1, {v(A+1)}")
        a(f"v_and_b32 {v(A+2)}, 7, {v(A)}")
        a(f"v_xor_b32 {v(A+1)}, {v(A+1)}, {v(A+2)}")
        a(f"v_lshlrev_b32 {v(A+1)}, 4, {v(A+1)}")
        a(f"v_lshl_add_u32 {v(A)}, {v(A)}, 9, {v(A+1)}")
        a(f"v_xor_b32 {v(A+1)}, 16, {v(A)}")

    def xb_load(self):
        a = self.a; T = self.T
        a(f"buffer_load_dwordx4 {v(self.X,4)}, {v(self.vrow)}, {s(S_X,4)}, 0 offen")
        a(f"v_and_b32 {v(T)}, 0x3ff, {v(self.vrow)}")
        a(f"buffer_load_dwordx4 {v(self.B2,4)}, {v(T)}, {s(S_B2,4)}, 0 offen")

    def m_reduce(self):
        a = self.a; T = self.T
        a(f"s_lshl_b32 {s(S_T0+1)}, {s(S_W)}, 14")
        self.tile_write(self.G, 4, S_T0 + 1)
        A = self.S[1]
        self.rm_addr(A)
        a(f"v_add_u32 {v(A+2)}, 65536, {v(A)}")
        a(f"v_add_u32 {v(A+3)}, 65536, {v(A+1)}")
        a("s_waitcnt lgkmcnt(0)")
        a("s_barrier")
        G = self.G
        for p in range(8):
            for jb in range(2):
                a(f"ds_read_b128 {v(G+8*p+4*jb,4)}, {v(A+jb+2*(p>>2))} offset:{(p&3)*16384}")
        M = self.Cm
        a("s_waitcnt vmcnt(0)")
        for i in range(4):
            a(f"v_lshlrev_b32 {v(M+2*i)}, 16, {v(self.B2+i)}")
            a(f"v_and_b32 {v(M+2*i+1)}, 0xffff0000, {v(self.B2+i)}")
        for p in range(8):
            a(f"s_waitcnt lgkmcnt({14-2*p})")
            for i in range(4):
                a(f"v_pk_add_f32 {v(M+2*i,2)}, {v(M+2*i,2)}, {v(G+8*p+2*i,2)}")
        a(f"s_mov_b32 {s(S_T0)}, {hx(fbits(-LOG2E))}")
        for i in range(8): a(f"v_mul_f32 {v(M+8+i)}, {s(S_T0)}, {v(M+i)}")
        for i in range(8): a(f"v_exp_f32 {v(M+8+i)}, {v(M+8+i)}")
        for i in range(8): a(f"v_add_f32 {v(M+8+i)}, 1.0, {v(M+8+i)}")
        for i in range(8): a(f"v_rcp_f32 {v(M+8+i)}, {v(M+8+i)}")
        for i in range(8): a(f"v_mul_f32 {v(M+i)}, {v(M+i)}, {v(M+8+i)}")

    def o_issue(self):
        a = self.a
        a(f"s_lshl_b32 {s(S_T0)}, {s(S_R)}, 15")
        a(f"s_lshl_b32 {s(S_T0+1)}, {s(S_W)}, 12")
        a(f"s_add_u32 {s(S_T0)}, {s(S_T0)}, {s(S_T0+1)}")
        a(f"s_add_u32 {s(S_T0)}, {s(S_T0)}, {hx(WS_OF)}")
        a(f"s_add_u32 m0, {s(S_T0+1)}, {LDS_O}")
        a("s_nop 0")
        for i in range(4):
            a(f"buffer_load_dwordx4 {v(self.l16)}, {s(S_WS,4)}, {s(S_T0)} offen" + (f" offset:{i*1024}" if i else "") + f" lds {self.sc_ld}")

    def final(self):
        a = self.a; T = self.T
        A = self.S[1]; acc = self.O; F = self.G
        a(f"s_lshl_b32 {s(S_T0)}, {s(S_SLOT)}, 14")
        a(f"s_add_u32 {s(S_T0)}, {s(S_T0)}, {LDS_O}")
        a(f"v_add_u32 {v(T)}, {s(S_T0)}, {v(self.l16)}")
        self.rm_addr(A)
        a(f"s_lshl_b32 {s(S_T0+1)}, {s(S_SLOT)}, 14")
        a(f"s_lshl_b32 {s(S_T0)}, {s(S_RT)}, 7")
        a(f"s_add_u32 {s(S_T0+1)}, {s(S_T0+1)}, {s(S_T0)}")
        a("s_waitcnt vmcnt(0) lgkmcnt(0)")
        a("s_barrier")
        for i in range(16): a(f"ds_read_b128 {v(F+4*i,4)}, {v(T)} offset:{i*1024}")
        for i in range(16):
            a(f"s_waitcnt lgkmcnt({min(15-i,15)})")
            a(f"v_mfma_f32_32x32x16_bf16 {v(acc,16)}, {v(self.WO+4*i,4)}, {v(F+4*i,4)}, " + ("0" if i == 0 else v(acc, 16)))
        self.tile_write(acc, 1, S_T0 + 1)
        M = self.Cm
        for i in range(4):
            a(f"v_lshlrev_b32 {v(M+8+2*i)}, 16, {v(self.X+i)}")
            a(f"v_and_b32 {v(M+8+2*i+1)}, 0xffff0000, {v(self.X+i)}")
        a("s_waitcnt lgkmcnt(0)")
        a("s_barrier")
        for kh in range(2):
            for jb in range(2):
                a(f"ds_read_b128 {v(F+8*kh+4*jb,4)}, {v(A+jb)} offset:{kh*16384}")
        a("s_waitcnt lgkmcnt(0)")
        for i in range(4): a(f"v_pk_add_f32 {v(F+2*i,2)}, {v(F+2*i,2)}, {v(F+8+2*i,2)}")
        for i in range(4): a(f"v_pk_fma_f32 {v(F+2*i,2)}, {v(F+2*i,2)}, {v(M+2*i,2)}, {v(M+8+2*i,2)}")
        for i in range(4): a(f"v_cvt_pk_bf16_f32 {v(F+8+i)}, {v(F+2*i)}, {v(F+2*i+1)}")
        a(f"buffer_store_dwordx4 {v(F+8,4)}, {v(self.vrow)}, {s(S_OUT,4)}, 0 offen")

def build_k2():
    a = Asm(); a.nlab = 200
    prologue(a, "L_exit2")
    p = P2(a, "", "")
    p.ids()
    a("s_waitcnt lgkmcnt(0)")
    p.kv_issue()
    p.setup()
    a(f"s_mov_b32 {s(S_C0)}, {hx(fbits(2.0**64))}")
    a(f"s_mov_b32 {s(S_C0+1)}, {hx(fbits(2.0**120))}")
    p.attention()
    p.xb_load()
    a("s_barrier")
    p.m_reduce()
    a(f"v_lshlrev_b32 {v(p.T)}, 1, {v(p.vrow)}")
    a(f"s_mov_b32 {s(S_T0)}, {hx(WS_G)}")
    for jb in range(2):
        a(f"buffer_store_dwordx4 {v(p.Cm+4*jb,4)}, {v(p.T)}, {s(S_WS,4)}, {s(S_T0)} offen offset:{jb*16}")
    a.label("L_exit2")
    a("s_endpgm")
    return a.L

def build_k3():
    a = Asm(); a.nlab = 300
    prologue(a, "L_exit3")
    p = P2(a, "", "")
    p.ids()
    a(f"s_lshl_b32 {s(S_T0)}, {s(S_CG)}, 12")
    a(f"s_lshl_b32 {s(S_K0+2)}, {s(S_SLOT)}, 18")
    a(f"s_add_u32 {s(S_K0+2)}, {s(S_K0+2)}, {s(S_T0)}")
    a(f"s_lshl_b32 {s(S_T0)}, {s(S_RT)}, 10")
    a(f"s_add_u32 {s(S_K0+2)}, {s(S_K0+2)}, {s(S_T0)}")
    a(f"s_add_u32 {s(S_K0+2)}, {s(S_K0+2)}, {hx(WS_WOF)}")
    a("s_waitcnt lgkmcnt(0)")
    p.o_issue()
    for i in range(16): p.wo_load(i)
    a(f"buffer_load_dwordx4 {v(p.X,4)}, {v(p.vrow)}, {s(S_X,4)}, 0 offen")
    a(f"v_lshlrev_b32 {v(p.T)}, 1, {v(p.vrow)}")
    a(f"s_mov_b32 {s(S_T0)}, {hx(WS_G)}")
    for jb in range(2):
        a(f"buffer_load_dwordx4 {v(p.Cm+4*jb,4)}, {v(p.T)}, {s(S_WS,4)}, {s(S_T0)} offen offset:{jb*16}")
    p.final()
    a.label("L_exit3")
    a("s_endpgm")
    return a.L


def build_k1():
    a = Asm(); a.nlab = 100
    prologue(a, "L_exit1")
    phase1(a, "")
    a.label("L_exit1")
    a("s_endpgm")
    return a.L

HEADER = open("cdna_kernels/" + NAME + ".s.ref").read().split("; Override launch")[0] if __name__ == "__main__" else ""

def emit_split(path):
    ks = []
    hdr = HEADER
    for nm, fn in (("k1_kernel", build_k1), ("k2_kernel", build_k2), ("k3_kernel", build_k3)):
        L, n = fix_hazards(fn())
        print(nm, "instrs", len(L), "nops", n, file=sys.stderr)
        hdr += f"; @launch kernel={nm} grid=(256,1,1) block=(512,1,1) lds=163840\n"
        ks.append(kernel_text(nm, L, 256))
    open(path, "w").write(hdr + ".amdgcn_target \"amdgcn-amd-amdhsa--gfx950\"\n" + "".join(ks))

if __name__ == "__main__":
    emit_split("split.s")
```

```python
import sys, struct, math, os
EXP = set(os.environ.get('EXP', '').split(','))
from asmlib import *

NAME = "recurrent_scan__mha_block__mixer_channel_mlp__prompt"

MB = 1 << 20
WS_QF = 0 * MB
WS_KF = 2 * MB
WS_VF = 4 * MB
WS_OF = 6 * MB
WS_HF = 8 * MB
WS_W2F = 16 * MB
WS_WOF = 18 * MB
WS_FLAG = 24 * MB
WS_SIZE = 25 * MB
FL_EPOCH = WS_FLAG
FL1 = WS_FLAG + 4096
FL2 = WS_FLAG + 8192
FL3 = WS_FLAG + 12288
WS_STAMP = 24 * MB + 512 * 1024

def fbits(x): return struct.unpack("<I", struct.pack("<f", x))[0]
def hx(x): return "0x%x" % (x & 0xffffffff)
LOG2E = 1.4426950408889634
QSCALE = 0.25 * LOG2E
GELU_A = -2.0 * math.sqrt(2.0 / math.pi) * LOG2E
GELU_B = GELU_A * 0.044715
SC_ST = "sc1"
SC_LD = "sc1"

class Q:
    def __init__(self, a, name, mx):
        self.a = a; self.name = name; self.ops = []; self.mx = mx
    def add(self, tag): self.ops.append(tag)
    def wait(self, tag):
        idx = [i for i, t in enumerate(self.ops) if t == tag]
        if not idx: return None
        n = len(self.ops) - 1 - idx[-1]
        self.ops = self.ops[idx[-1] + 1:]
        self.a(f"s_waitcnt {self.name}({min(n, self.mx)})")
        return n
    def wait_all(self):
        self.ops = []; self.a(f"s_waitcnt {self.name}(0)")

S_X = 4; S_QKV = 8; S_WO = 12; S_W1 = 16; S_B1 = 20; S_W2 = 24; S_B2 = 28; S_OUT = 32; S_WS = 36
S_W = 42; S_RT = 43; S_SLOT = 44; S_XCD = 45; S_IDX = 46; S_RB = 47; S_U = 48; S_ROT = 49
S_T0 = 50
S_C0 = 58
S_XB = 66; S_WB = 67; S_E = 68; S_QB = 69; S_R = 70; S_CG = 71
S_K0 = 72
S_LOOP = 76; S_ITEM = 77; S_EP = 78; S_PT = 79; S_KV = 80
S_ST = 84

STAMPS = None
def stamp(a, name):
    if STAMPS and name in STAMPS:
        a(f"s_memrealtime {s(S_ST + 2 * STAMPS.index(name), 2)}")
def stamps_flush(a):
    if not STAMPS: return
    a(f"s_lshl_b32 {s(S_T0)}, s2, 3")
    a(f"s_add_u32 {s(S_T0)}, {s(S_T0)}, {s(S_W)}")
    a(f"s_lshl_b32 {s(S_T0)}, {s(S_T0)}, 7")
    a(f"s_add_u32 {s(S_T0)}, {s(S_T0)}, {hx(WS_STAMP)}")
    a("s_waitcnt lgkmcnt(0)")
    a("s_mov_b64 exec, 1")
    for i in range(len(STAMPS)):
        a(f"v_mov_b32 v{2+i}, {s(S_ST+2*i)}")
        a(f"buffer_store_dword v{2+i}, off, {s(S_WS,4)}, {s(S_T0)} offset:{4*i}")

def prologue(a, exit_label):
    stamp(a, "entry")
    a(f"s_cmp_ge_u32 s2, 256")
    a(f"s_cbranch_scc1 {exit_label}")
    for (sr, off) in [(S_X, 0), (S_QKV, 8), (S_W1, 32), (S_WS, 80), (S_B1, 40), (S_WO, 16), (S_W2, 48), (S_B2, 56), (S_OUT, 64)]:
        a(f"s_load_dwordx2 {s(sr,2)}, s[0:1], {off}")
    a(f"v_lshrrev_b32 v1, 6, v0")
    a(f"v_and_b32 v0, 63, v0")
    a(f"v_readfirstlane_b32 {s(S_W)}, v1")
    for (sr, nb) in [(S_X, 2048*512*2), (S_QKV, 512*1536*2), (S_WO, 512*512*2), (S_W1, 512*1792*2), (S_B1, 1792*2),
                     (S_W2, 1792*512*2), (S_B2, 512*2), (S_OUT, 2048*512*2), (S_WS, WS_SIZE)]:
        a(f"s_mov_b32 {s(sr+2)}, {hx(nb)}")
        a(f"s_mov_b32 {s(sr+3)}, 0x20000")
    a(f"s_and_b32 {s(S_XCD)}, s2, 7")
    a(f"s_lshr_b32 {s(S_IDX)}, s2, 3")
    a(f"s_and_b32 {s(S_RT)}, {s(S_W)}, 3")
    a(f"s_lshr_b32 {s(S_SLOT)}, {s(S_W)}, 2")

def flag_store(a, vt, soff):
    a(f"v_mov_b32 {v(vt)}, {s(S_EP)}")
    a("s_mov_b64 exec, 1")
    a(f"buffer_store_dword {v(vt)}, off, {s(S_WS,4)}, {s(soff)} sc0 sc1")
    a("s_mov_b64 exec, -1")

def poll_load(a, vt, soff, wide):
    if wide: a(f"buffer_load_dwordx4 {v(vt,4)}, {v(vt+4)}, {s(S_WS,4)}, {s(soff)} offen sc0 sc1")
    else: a(f"buffer_load_dword {v(vt)}, {v(vt+4)}, {s(S_WS,4)}, {s(soff)} offen sc0 sc1")
def poll_issue(a, vt, soff, wide):
    if wide: a(f"v_lshlrev_b32 {v(vt+4)}, 4, v0")
    else:
        a(f"v_and_b32 {v(vt+4)}, 31, v0")
        a(f"v_lshlrev_b32 {v(vt+4)}, 2, {v(vt+4)}")
    poll_load(a, vt, soff, wide)
def poll_wait(a, vt, soff, wide):
    L = a.newlabel("L_poll"); Ld = a.newlabel("L_polld")
    a(f"s_mov_b32 {s(S_PT)}, 0x8000")
    a.label(L)
    a("s_waitcnt vmcnt(0)")
    if wide:
        for i in range(4): a(f"v_xor_b32 {v(vt+i)}, {s(S_EP)}, {v(vt+i)}")
        a(f"v_or_b32 {v(vt)}, {v(vt)}, {v(vt+1)}")
        a(f"v_or3_b32 {v(vt)}, {v(vt)}, {v(vt+2)}, {v(vt+3)}")
        a(f"v_cmp_ne_u32 vcc, 0, {v(vt)}")
    else:
        a(f"v_cmp_ne_u32 vcc, {s(S_EP)}, {v(vt)}")
    a(f"s_cbranch_vccz {Ld}")
    poll_load(a, vt, soff, wide)
    a(f"s_sub_u32 {s(S_PT)}, {s(S_PT)}, 1")
    a(f"s_cmp_lg_u32 {s(S_PT)}, 0")
    a(f"s_cbranch_scc1 {L}")
    a("s_waitcnt vmcnt(0)")
    a.label(Ld)

LDS_ONES = 0
LDS_V = 32768
LDS_K = 98304
LDS_SCR = LDS_V + 6 * 8192
LDS_QST = LDS_V + 7 * 8192
LDS_CNT = LDS_SCR + 4096
LDS_O = 131072

class Filler:
    def __init__(self, lines): self.L = list(lines); self.i = 0
    def cost(self, t):
        return 2 if t.startswith("v_exp") or t.startswith("v_rcp") else 1
    def emit(self, a, budget, vm=None):
        while self.i < len(self.L) and budget > 0:
            t = self.L[self.i]; self.i += 1
            a(t); budget -= self.cost(t)
            if t.startswith("buffer_") and vm is not None: vm.add("st")
    def drain(self, a, vm=None): self.emit(a, 1 << 30, vm)

SLOT = 32768
class P1:
    def __init__(self, a):
        self.a = a
        R = self.R = Regs(2, 256)
        self.XF = R.alloc(128, 4)
        self.ACC = [R.alloc(16, 4), R.alloc(16, 4)]
        self.WF = [[R.alloc(4, 4), R.alloc(4, 4)], [R.alloc(4, 4), R.alloc(4, 4)]]
        self.CS = [R.alloc(4, 4), R.alloc(4, 4)]
        self.SEL = R.alloc(4, 4)
        self.XS = R.alloc(4, 4)
        self.WSd = R.alloc(4, 4)
        self.T = R.alloc(24, 4)
        self.xa = [R.alloc() for _ in range(4)]
        self.wa = [R.alloc() for _ in range(4)]
        self.vx0 = R.alloc(); self.vx1 = R.alloc()
        self.vw0 = R.alloc(); self.vw1 = R.alloc(); self.vw2 = R.alloc(); self.vwh = R.alloc()
        self.st = R.alloc(4, 2)
        self.u0 = R.alloc(); self.u1 = R.alloc()
        self.bias = [R.alloc() for _ in range(2)]
        self.r1 = R.alloc(); self.rH = R.alloc()
        self.vo = R.alloc()
        self.cA = R.alloc()
        self.vscr = R.alloc()
        self.vep = self.r1
        self.abase = 0

    def setup(self):
        a = self.a; T = self.T
        a(f"s_and_b32 {s(S_T0)}, {s(S_XCD)}, 1")
        a(f"s_lshl_b32 {s(S_T0)}, {s(S_T0)}, 3")
        a(f"s_and_b32 {s(S_QB)}, {s(S_IDX)}, 7")
        a(f"s_add_u32 {s(S_RB)}, {s(S_T0)}, {s(S_QB)}")
        a(f"s_and_b32 {s(S_T0)}, {s(S_XCD)}, 6")
        a(f"s_lshr_b32 {s(S_T0+1)}, {s(S_IDX)}, 4")
        a(f"s_add_u32 {s(S_U)}, {s(S_T0)}, {s(S_T0+1)}")
        a(f"s_lshl_b32 {s(S_XB)}, {s(S_W)}, 11")
        a(f"s_lshl_b32 {s(S_WB)}, {s(S_W)}, 10")
        a(f"v_lshrrev_b32 {v(T)}, 3, v0")
        a(f"v_and_b32 {v(T+1)}, 7, v0")
        a(f"v_lshrrev_b32 {v(T+2)}, 4, v0")
        a(f"v_xor_b32 {v(T+3)}, {v(T+1)}, {v(T+2)}")
        a(f"s_lshl_b32 {s(S_T0)}, {s(S_RB)}, 17")
        a(f"s_lshl_b32 {s(S_T0+1)}, {s(S_W)}, 14")
        a(f"s_add_u32 {s(S_T0)}, {s(S_T0)}, {s(S_T0+1)}")
        a(f"v_lshlrev_b32 {v(T+4)}, 10, {v(T)}")
        a(f"v_add_u32 {v(T+4)}, {s(S_T0)}, {v(T+4)}")
        a(f"v_lshl_add_u32 {v(self.vx0)}, {v(T+3)}, 4, {v(T+4)}")
        a(f"v_xor_b32 {v(T+3)}, 4, {v(T+3)}")
        a(f"v_lshl_add_u32 {v(self.vx1)}, {v(T+3)}, 4, {v(T+4)}")
        a(f"v_add_u32 {v(self.vx1)}, {8192-1024}, {v(self.vx1)}")
        a(f"v_and_b32 {v(T+2)}, 1, {v(T+2)}")
        a(f"v_lshlrev_b32 {v(T+2)}, 2, {v(T+2)}")
        a(f"v_xor_b32 {v(T+5)}, {v(T+1)}, {v(T+2)}")
        a(f"v_lshlrev_b32 {v(T+5)}, 4, {v(T+5)}")
        a(f"s_lshl_b32 {s(S_T0)}, {s(S_W)}, 3")
        a(f"v_add_u32 {v(T)}, {s(S_T0)}, {v(T)}")
        a(f"s_mul_i32 {s(S_K0+1)}, {s(S_U)}, 448")
        a(f"s_and_b32 {s(S_T0)}, {s(S_U)}, 1")
        a(f"s_lshl_b32 {s(S_T0+1)}, {s(S_T0)}, 6")
        a(f"s_add_u32 {s(S_K0+2)}, {s(S_K0+1)}, {s(S_T0+1)}")
        a(f"s_xor_b32 {s(S_T0)}, {s(S_T0)}, 1")
        a(f"s_mul_i32 {s(S_T0)}, {s(S_T0)}, 384")
        a(f"s_add_u32 {s(S_K0+1)}, {s(S_K0+1)}, {s(S_T0)}")
        a(f"s_lshl_b32 {s(S_T0+3)}, {s(S_U)}, 7")

    def wvoff(self, dst, stride, scol):
        a = self.a; T = self.T
        a(f"v_mul_u32_u24 {v(dst)}, {stride}, {v(T)}")
        a(f"v_add3_u32 {v(dst)}, {v(dst)}, {v(T+5)}, {s(scol)}")

    def read_addrs(self):
        a = self.a; T = self.T
        a(f"s_lshl_b32 {s(S_T0)}, {s(S_SLOT)}, 1")
        a(f"s_xor_b32 {s(S_ROT)}, {s(S_RT)}, {s(S_T0)}")
        a(f"v_and_b32 {v(T)}, 31, v0")
        a(f"v_lshrrev_b32 {v(T+1)}, 5, v0")
        a(f"v_bfe_u32 {v(T+2)}, v0, 1, 3")
        a(f"v_xor_b32 {v(T+2)}, {v(T+2)}, {v(T+1)}")
        a(f"s_lshl_b32 {s(S_T0)}, {s(S_ROT)}, 1")
        a(f"v_xor_b32 {v(T+2)}, {s(S_T0)}, {v(T+2)}")
        a(f"v_lshlrev_b32 {v(T+2)}, 4, {v(T+2)}")
        a(f"v_lshl_add_u32 {v(T+2)}, {v(T)}, 7, {v(T+2)}")
        a(f"s_lshl_b32 {s(S_T0)}, {s(S_RT)}, 12")
        a(f"v_add_u32 {v(self.xa[0])}, {s(S_T0)}, {v(T+2)}")
        for j in range(1, 4):
            a(f"v_xor_b32 {v(self.xa[j])}, {j<<5}, {v(self.xa[0])}")
        a(f"v_bfe_u32 {v(T+2)}, v0, 2, 2")
        a(f"v_lshl_add_u32 {v(T+3)}, {v(T+1)}, 3, {v(T+2)}")
        a(f"v_lshrrev_b32 {v(T+2)}, 1, {v(T+2)}")
        a(f"v_xor_b32 {v(T+2)}, {s(S_SLOT)}, {v(T+2)}")
        a(f"v_lshlrev_b32 {v(T+2)}, 6, {v(T+2)}")
        a(f"v_lshl_add_u32 {v(T+2)}, {v(T+3)}, 7, {v(T+2)}")
        a(f"v_bfe_u32 {v(T+4)}, v0, 4, 1")
        a(f"v_lshl_add_u32 {v(T+2)}, {v(T+4)}, 5, {v(T+2)}")
        a(f"v_and_b32 {v(T+5)}, 3, v0")
        a(f"v_lshl_add_u32 {v(T+2)}, {v(T+5)}, 3, {v(T+2)}")
        a(f"s_lshl_b32 {s(S_T0)}, {s(S_ROT)}, 11")
        a(f"v_add_u32 {v(self.wa[0])}, {s(S_T0)}, {v(T+2)}")
        for j in range(1, 4):
            a(f"v_xor_b32 {v(self.wa[j])}, {j<<11}, {v(self.wa[0])}")
        a(f"v_bfe_u32 {v(T+2)}, v0, 2, 1")
        a(f"v_xor_b32 {v(T+2)}, {v(T+2)}, {v(T+4)}")
        a(f"v_or_b32 {v(T+2)}, {v(T+2)}, {v(T+5)}")
        a(f"v_cmp_eq_u32 vcc, 0, {v(T+2)}")
        a(f"v_mov_b32 {v(T+3)}, 0x3f003f00")
        a(f"v_cndmask_b32 {v(self.SEL)}, 0, {v(T+3)}, vcc")
        for i in range(1, 4): a(f"v_mov_b32 {v(self.SEL+i)}, {v(self.SEL)}")
        for i in range(4): a(f"v_mov_b32 {v(self.st+i)}, 0")
        a(f"v_mov_b32 {v(self.cA)}, {hx(fbits(GELU_A))}")
        a(f"s_mov_b32 {s(S_C0)}, {hx(fbits(GELU_B))}")
        a(f"s_mov_b32 {s(S_C0+1)}, 0xffff0000")
        a(f"s_mov_b32 {s(S_C0+4)}, 0x03020302")
        a(f"s_mov_b32 {s(S_C0+5)}, 0x07060302")
        a(f"s_mov_b32 {s(S_C0+6)}, 0x01000100")
        a(f"v_lshlrev_b32 {v(self.vscr)}, 2, v0")
        a(f"s_lshr_b32 {s(S_CG)}, {s(S_IDX)}, 3")
        a(f"s_lshl_b32 {s(S_E)}, {s(S_XCD)}, 2")
        a(f"s_add_u32 {s(S_E)}, {s(S_E)}, {s(S_CG)}")
        a(f"s_lshl_b32 {s(S_R)}, {s(S_QB)}, 3")
        a(f"s_add_u32 {s(S_R)}, {s(S_R)}, {s(S_XCD)}")

    def rebase(self, regs, newbase):
        d = newbase - self.abase
        if d:
            for r in regs: self.a(f"v_add_u32 {v(r)}, {hx(d)}, {v(r)}")
            self.abase = newbase

    def dma(self, vm, tag, srd, voff, ldsbase_s, ldsoff, soff, imm=0):
        a = self.a
        if ldsoff is not None:
            a(f"s_add_u32 m0, {s(ldsbase_s)}, {hx(ldsoff)}")
        if soff is not None:
            a(f"s_mov_b32 {s(S_T0+2)}, {hx(soff)}")
        a(f"buffer_load_dwordx4 {v(voff)}, {s(srd,4)}, {s(S_T0+2)} offen" + (f" offset:{imm}" if imm else "") + " lds")
        vm.add(tag)

    def gelu(self, acc, ks_sgpr):
        L = []; a = L.append; T = self.T
        for half in range(2):
            A = acc + half * 8; u = T + 4; t = T + 12
            for i in range(8): a(f"v_mul_f32 {v(u+i)}, {v(A+i)}, {v(self.rH)}")
            for i in range(8): a(f"v_mul_f32 {v(t+i)}, {v(u+i)}, {v(u+i)}")
            for i in range(8): a(f"v_fma_f32 {v(t+i)}, {v(t+i)}, {s(S_C0)}, {v(self.cA)}")
            for i in range(8): a(f"v_mul_f32 {v(t+i)}, {v(t+i)}, {v(u+i)}")
            for i in range(8): a(f"v_exp_f32 {v(t+i)}, {v(t+i)}")
            for i in range(8): a(f"v_add_f32 {v(t+i)}, 1.0, {v(t+i)}")
            for i in range(8): a(f"v_rcp_f32 {v(t+i)}, {v(t+i)}")
            for i in range(8): a(f"v_mul_f32 {v(u+i)}, {v(u+i)}, {v(t+i)}")
            o = T + 20 if half else T
            for p in range(4): a(f"v_cvt_pk_bf16_f32 {v(o+p)}, {v(u+2*p)}, {v(u+2*p+1)}")
            a(f"buffer_store_dwordx4 {v(o,4)}, {v(self.vo)}, {s(S_WS,4)}, {s(ks_sgpr)} offen offset:{half*1024} {SC_ST}")
        return L

    def wside(self, cs, bias):
        a = self.a; W = self.WSd
        a(f"v_perm_b32 {v(W)}, {v(cs)}, {v(cs)}, {s(S_C0+4)}")
        a(f"v_and_b32 {v(W+3)}, {s(S_C0+1)}, {v(cs)}")
        a(f"v_sub_f32 {v(W+3)}, {v(cs)}, {v(W+3)}")
        a(f"v_perm_b32 {v(W+1)}, {v(W+3)}, {v(W+3)}, {s(S_C0+4)}")
        if bias is None: a(f"v_mov_b32 {v(W+2)}, 0")
        else: a(f"v_perm_b32 {v(W+2)}, {v(bias)}, {v(bias)}, {s(S_C0+6)}")
        a(f"v_mov_b32 {v(W+3)}, 0")

    def mf(self, acc, wfrag, xfrag, transposed, c=None):
        c = v(acc, 16) if c is None else c
        if transposed: self.a(f"v_mfma_f32_32x32x16_bf16 {v(acc,16)}, {v(wfrag,4)}, {v(xfrag,4)}, {c}")
        else: self.a(f"v_mfma_f32_32x32x16_bf16 {v(acc,16)}, {v(xfrag,4)}, {v(wfrag,4)}, {c}")
    def mcs(self, cs, wfrag, first):
        self.a(f"v_mfma_f32_16x16x32_bf16 {v(cs,4)}, {v(self.SEL,4)}, {v(wfrag,4)}, " + ("0" if first else v(cs, 4)))

    def second_tile(self, acc, addrs, offs_fn, lg, vm, cs, filler=None, hooks=None):
        a = self.a
        WB = [self.WF[0][0], self.WF[1][0], self.WF[0][1], self.WF[1][1]]
        def rd(sidx):
            c, j = divmod(sidx, 4)
            for u in range(2):
                off = offs_fn(c, u)
                base = off // 65536 * 65536
                self.rebase(addrs, base)
                a(f"ds_read_b64_tr_b16 {v(WB[sidx&3]+2*u,2)}, {v(addrs[j])} offset:{off-base}")
                lg.add(("w", sidx))
        rd(0); rd(1)
        for sidx in range(32):
            if sidx + 2 < 32: rd(sidx + 2)
            lg.wait(("w", sidx))
            self.mf(acc, WB[sidx & 3], self.XF + 4 * sidx, True, c=("0" if sidx == 0 else None))
            if filler: filler.emit(a, 5, vm)
            if sidx % 4 == 0: self.mcs(cs, WB[sidx & 3], sidx == 0)
            if hooks and sidx in hooks: hooks[sidx]()
        if filler: filler.drain(a, vm)

    def cs_put(self, cs, scr):
        a = self.a
        a(f"s_lshl_b32 {s(S_T0)}, {s(S_W)}, 8")
        a(f"s_add_u32 {s(S_T0)}, {s(S_T0)}, {hx(scr)}")
        a(f"v_add_u32 {v(self.u0)}, {s(S_T0)}, {v(self.vscr)}")
        a(f"ds_write_b32 {v(self.u0)}, {v(cs)}")
        a(f"s_lshl_b32 {s(S_T0)}, {s(S_SLOT)}, 10")
        a(f"s_add_u32 {s(S_T0)}, {s(S_T0)}, {hx(scr)}")
        a(f"v_add_u32 {v(self.u0)}, {s(S_T0)}, {v(self.vscr)}")
        a("s_waitcnt lgkmcnt(0)")
    def cs_get(self, cs):
        a = self.a
        a(f"ds_read2st64_b32 {v(cs,2)}, {v(self.u0)} offset0:0 offset1:1")
        a(f"ds_read2st64_b32 {v(cs+2,2)}, {v(self.u0)} offset0:2 offset1:3")
        a("s_waitcnt lgkmcnt(0)")
        a(f"v_add_f32 {v(cs)}, {v(cs)}, {v(cs+1)}")
        a(f"v_add_f32 {v(cs+2)}, {v(cs+2)}, {v(cs+3)}")
        a(f"v_add_f32 {v(cs)}, {v(cs)}, {v(cs+2)}")

    def kv_dma(self, chunks):
        a = self.a
        for (m, c) in chunks:
            a(f"s_add_u32 m0, {s(S_T0+4)}, {(LDS_K if m == 'K' else LDS_V) + c*8192}")
            a(f"s_add_u32 {s(S_T0+2)}, {s(S_KV)}, {hx((WS_KF if m == 'K' else WS_VF) + c*8192)}")
            for q in range(2):
                a(f"buffer_load_dwordx4 {v(self.vo)}, {s(S_WS,4)}, {s(S_T0+2)} offen" + (" offset:1024" if q else "") + f" {SC_LD} lds")

    def body(self, typ):
        a = self.a; T = self.T; st = self.st; CS = self.CS; X = self.XS
        vm = Q(a, "vmcnt", 63); lg = Q(a, "lgkmcnt", 15)
        self.abase = 0
        if typ == 0:
            self.wvoff(self.vw0, 3072, S_T0 + 3)
            a(f"v_add_u32 {v(self.vw1)}, 1024, {v(self.vw0)}")
            a(f"s_add_u32 {s(S_K0+3)}, {s(S_K0+2)}, 256")
            U = [(S_QKV, self.vw0, 3072), (S_QKV, self.vw1, 3072)]
        else:
            a(f"s_add_u32 {s(S_T0+3)}, {s(S_T0+3)}, 2048")
            self.wvoff(self.vw0, 3072, S_T0 + 3)
            self.wvoff(self.vw1, 3584, S_K0 + 2)
            a(f"s_add_u32 {s(S_K0+3)}, {s(S_K0+2)}, 128")
            U = [(S_QKV, self.vw0, 3072), (S_W1, self.vw1, 3584)]
        a("s_waitcnt lgkmcnt(0)")
        def issue(g):
            if g < 8:
                sl = (g % 5) * SLOT
                self.dma(vm, g, S_X, self.vx0, S_XB, sl, g * 128)
                self.dma(vm, g, S_X, self.vx1, None, None, None, imm=1024)
                for un in range(2):
                    srd, vo, stride = U[un]
                    self.dma(vm, g, srd, vo, S_WB, sl + 16384 + un * 8192, g * 64 * stride)
            elif g in (8, 9):
                for i in range(4):
                    self.dma(vm, g, S_W1, self.vw2, S_WB, (g - 5) * SLOT + i * 8192, ((g - 8) * 256 + i * 64) * 3584)
            elif g == 10 and typ == 0:
                for i in range(4):
                    self.dma(vm, g, S_W1, self.vwh, S_WB, i * 8192, i * 128 * 3584)
        issue(0)
        if 'nog0' not in EXP: a("s_barrier")
        issue(1)
        if 'nog0' not in EXP: a("s_barrier")
        for g in range(2, 5): issue(g)
        a(f"s_mov_b32 {s(S_T0+2)}, {hx(FL_EPOCH)}")
        a(f"buffer_load_dword {v(self.vep)}, off, {s(S_WS,4)}, {s(S_T0+2)} sc0 sc1")
        vm.add("misc")
        self.wvoff(self.vw2, 3584, S_K0 + 3)
        if typ == 0:
            a(f"v_lshrrev_b32 {v(T)}, 2, v0")
            a(f"s_lshl_b32 {s(S_T0)}, {s(S_W)}, 4")
            a(f"v_add_u32 {v(T)}, {s(S_T0)}, {v(T)}")
            a(f"v_and_b32 {v(T+5)}, 3, v0")
            a(f"v_lshlrev_b32 {v(T+5)}, 4, {v(T+5)}")
            self.wvoff(self.vwh, 3584, S_K0 + 1)
        a(f"v_and_b32 {v(T)}, 31, v0")
        a(f"v_lshlrev_b32 {v(T)}, 1, {v(T)}")
        a(f"s_lshl_b32 {s(S_T0)}, {s(S_SLOT)}, 6")
        if typ == 0:
            a(f"s_add_u32 {s(S_K0+2)}, {s(S_K0+3)}, {s(S_T0)}")
            a(f"s_mov_b32 {s(S_K0+3)}, {s(S_K0+1)}")
        else:
            a(f"s_add_u32 {s(S_K0+2)}, {s(S_K0+2)}, {s(S_T0)}")
            a(f"s_add_u32 {s(S_K0+3)}, {s(S_K0+3)}, {s(S_T0)}")
        for i in range(2):
            a(f"buffer_load_ushort {v(self.bias[i])}, {v(T)}, {s(S_B1,4)}, {s(S_K0+2+i)} offen")
            vm.add("misc")
        self.read_addrs()
        tr = [typ == 0, True]
        def reads(sidx):
            c, j = divmod(sidx, 4)
            sl = (c % 5) * SLOT
            base = sl // 65536 * 65536
            self.rebase(self.xa + self.wa, base)
            a(f"ds_read_b128 {v(self.XF+4*sidx,4)}, {v(self.xa[j])} offset:{sl-base}")
            lg.add(sidx)
            for un in range(2):
                for u in range(2):
                    a(f"ds_read_b64_tr_b16 {v(self.WF[sidx&1][un]+2*u,2)}, {v(self.wa[j])} offset:{sl-base+16384+un*8192+u*512}")
                    lg.add(sidx)
        pend = []
        def compute(sidx):
            j = sidx & 3
            xf = self.XF + 4 * sidx
            if j < 2 and 'nostat' not in EXP:
                for i in range(4):
                    pend.extend([f"v_lshlrev_b32 {v(self.u0)}, 16, {v(xf+i)}",
                                 f"v_and_b32 {v(self.u1)}, {s(S_C0+1)}, {v(xf+i)}",
                                 f"v_add_f32 {v(st)}, {v(st)}, {v(self.u0)}",
                                 f"v_fmac_f32 {v(st+1)}, {v(self.u0)}, {v(self.u0)}",
                                 f"v_add_f32 {v(st+2)}, {v(st+2)}, {v(self.u1)}",
                                 f"v_fmac_f32 {v(st+3)}, {v(self.u1)}, {v(self.u1)}"])
            for un in range(2):
                self.mf(self.ACC[un], self.WF[sidx & 1][un], xf, tr[un], c=("0" if sidx == 0 else None))
                for _ in range(6):
                    if pend: a(pend.pop(0))
                if j == 0 and 'nostat' not in EXP: self.mcs(CS[un], self.WF[sidx & 1][un], sidx == 0)
        for c in range(8):
            if c > 0: lg.wait(4 * c - 1)
            vm.wait(c)
            a("s_barrier")
            if c == 0: stamp(a, "k0")
            reads(4 * c)
            if c > 0:
                issue(4 + c)
                compute(4 * c - 1)
            for j in range(3):
                reads(4 * c + j + 1)
                lg.wait(4 * c + j)
                compute(4 * c + j)
        lg.wait(31)
        compute(31)
        assert not pend
        stamp(a, "kend")
        SCR = SLOT + 16384
        vm.wait("misc")
        a(f"v_readfirstlane_b32 {s(S_EP)}, {v(self.vep)}")
        a(f"v_add_f32 {v(st)}, {v(st)}, {v(st+2)}")
        a(f"v_add_f32 {v(st+1)}, {v(st+1)}, {v(st+3)}")
        a(f"s_add_u32 {s(S_EP)}, {s(S_EP)}, 1")
        a(f"s_lshl_b32 {s(S_T0)}, {s(S_W)}, 10")
        a(f"s_add_u32 {s(S_T0)}, {s(S_T0)}, {SCR}")
        a(f"v_add_u32 {v(T)}, {s(S_T0)}, {v(self.vscr)}")
        a(f"ds_write2st64_b32 {v(T)}, {v(st)}, {v(st+1)} offset0:0 offset1:1")
        a(f"ds_write2st64_b32 {v(T)}, {v(CS[0])}, {v(CS[1])} offset0:2 offset1:3")
        a(f"v_xor_b32 {v(T)}, 4096, {v(T)}")
        a(f"s_lshl_b32 {s(S_T0)}, {s(S_SLOT)}, 12")
        a(f"s_add_u32 {s(S_T0)}, {s(S_T0)}, {SCR}")
        a(f"v_add_u32 {v(T+1)}, {s(S_T0)}, {v(self.vscr)}")
        lg.wait_all()
        a("s_barrier")
        a(f"ds_read2st64_b32 {v(T+2,2)}, {v(T)} offset0:0 offset1:1")
        for r in range(4):
            a(f"ds_read2st64_b32 {v(T+4+2*r,2)}, {v(T+1)} offset0:{4*r+2} offset1:{4*r+3}")
        a(f"v_mov_b32 {v(T+12)}, {LDS_CNT}")
        a(f"v_mov_b32 {v(T+13)}, 0")
        a(f"ds_write_b32 {v(T+12)}, {v(T+13)}")
        a("s_waitcnt lgkmcnt(5)")
        a(f"v_add_f32 {v(st)}, {v(st)}, {v(T+2)}")
        a(f"v_add_f32 {v(st+1)}, {v(st+1)}, {v(T+3)}")
        a(f"v_mov_b32 {v(T+2)}, {v(st)}")
        a(f"v_mov_b32 {v(T+3)}, {v(st+1)}")
        a(f"v_permlane32_swap_b32 {v(st)}, {v(T+2)}")
        a(f"v_permlane32_swap_b32 {v(st+1)}, {v(T+3)}")
        a(f"v_add_f32 {v(st)}, {v(st)}, {v(T+2)}")
        a(f"v_add_f32 {v(st+1)}, {v(st+1)}, {v(T+3)}")
        a(f"v_mul_f32 {v(st)}, {hx(fbits(-1.0/512))}, {v(st)}")
        a(f"v_mul_f32 {v(T+2)}, {v(st)}, {v(st)}")
        a(f"v_mov_b32 {v(T+3)}, {hx(fbits(1.0/512))}")
        a(f"v_fma_f32 {v(st+1)}, {v(st+1)}, {v(T+3)}, -{v(T+2)}")
        a(f"v_max_f32 {v(st+1)}, 0, {v(st+1)}")
        a(f"v_add_f32 {v(T+2)}, {hx(fbits(1e-5))}, {v(st+1)}")
        a(f"v_rsq_f32 {v(self.r1)}, {v(T+2)}")
        a(f"v_rcp_f32 {v(T+3)}, {v(T+2)}")
        a(f"v_mul_f32 {v(T+3)}, {v(st+1)}, {v(T+3)}")
        a(f"v_add_f32 {v(T+3)}, {hx(fbits(1e-5))}, {v(T+3)}")
        a(f"v_mul_f32 {v(T+3)}, {v(T+3)}, {v(T+2)}")
        a(f"v_rsq_f32 {v(self.rH)}, {v(T+3)}")
        a(f"v_sqrt_f32 {v(T+3)}, {v(T+3)}")
        a(f"v_and_b32 {v(T+2)}, {s(S_C0+1)}, {v(st)}")
        a(f"v_mul_f32 {v(T+3)}, 0.5, {v(T+3)}")
        a(f"v_sub_f32 {v(T+2)}, {v(st)}, {v(T+2)}")
        a(f"v_perm_b32 {v(X)}, {v(T+2)}, {v(st)}, {s(S_C0+5)}")
        a(f"v_mov_b32 {v(X+1)}, {v(X)}")
        a(f"v_and_b32 {v(T+2)}, {s(S_C0+1)}, {v(T+3)}")
        a(f"v_sub_f32 {v(T+2)}, {v(T+3)}, {v(T+2)}")
        a(f"v_perm_b32 {v(X+2)}, {v(T+2)}, {v(T+3)}, {s(S_C0+5)}")
        a(f"v_mov_b32 {v(X+3)}, 0")
        lg.wait_all()
        for i in range(2):
            a(f"v_add_f32 {v(T+4+i)}, {v(T+4+i)}, {v(T+6+i)}")
            a(f"v_add_f32 {v(T+8+i)}, {v(T+8+i)}, {v(T+10+i)}")
            a(f"v_add_f32 {v(CS[i])}, {v(T+4+i)}, {v(T+8+i)}")
        a(f"s_lshl_b32 {s(S_T0+4)}, {s(S_RB)}, 2")
        a(f"s_add_u32 {s(S_T0+4)}, {s(S_T0+4)}, {s(S_RT)}")
        a(f"s_lshl_b32 {s(S_T0+5)}, {s(S_U)}, 2")
        a(f"s_lshl_b32 {s(S_T0)}, {s(S_SLOT)}, 1")
        a(f"s_add_u32 {s(S_T0+5)}, {s(S_T0+5)}, {s(S_T0)}")
        a(f"s_lshl_b32 {s(S_T0)}, {s(S_T0+5)}, 16")
        a(f"s_lshl_b32 {s(S_T0+1)}, {s(S_T0+4)}, 10")
        a(f"s_add_u32 {s(S_T0)}, {s(S_T0)}, {s(S_T0+1)}")
        if typ == 0:
            for un in (1, 0):
                self.wside(CS[un], None)
                self.mf(self.ACC[un], self.WSd, X, True)
            a(f"s_add_u32 {s(S_T0+1)}, {s(S_T0)}, 65536")
            a(f"v_mul_f32 {v(T+22)}, {hx(fbits(QSCALE))}, {v(self.r1)}")
            a(f"v_and_b32 {v(T)}, 0x33, v0")
            a(f"v_bfe_u32 {v(T+1)}, v0, 2, 1")
            a(f"v_lshl_add_u32 {v(T)}, {v(T+1)}, 3, {v(T)}")
            a(f"v_bfe_u32 {v(T+1)}, v0, 3, 1")
            a(f"v_lshl_add_u32 {v(T)}, {v(T+1)}, 2, {v(T)}")
            a(f"v_lshlrev_b32 {v(T)}, 4, {v(T)}")
            a(f"v_add_u32 {v(T+21)}, {hx(WS_KF)}, {v(T)}")
            a(f"v_lshlrev_b32 {v(self.vo)}, 4, v0")
            for un, rr, vo in ((1, self.r1, T + 21), (0, T + 22, self.vo)):
                acc = self.ACC[un]
                o = T + 4 + 8 * un
                for hh in range(2):
                    for i in range(8): a(f"v_mul_f32 {v(acc+8*hh+i)}, {v(acc+8*hh+i)}, {v(rr)}")
                    for p in range(4): a(f"v_cvt_pk_bf16_f32 {v(o+4*hh+p)}, {v(acc+8*hh+2*p)}, {v(acc+8*hh+2*p+1)}")
                    a(f"buffer_store_dwordx4 {v(o+4*hh,4)}, {v(vo)}, {s(S_WS,4)}, {s(S_T0+hh)} offen {SC_ST}")
                    vm.add("qkv")
        else:
            self.wside(CS[0], None)
            self.mf(self.ACC[0], self.WSd, X, False)
            a(f"v_mul_f32 {v(T+3)}, 0.5, {v(self.r1)}")
            a(f"v_and_b32 {v(T+2)}, {s(S_C0+1)}, {v(T+3)}")
            a(f"v_sub_f32 {v(T+2)}, {v(T+3)}, {v(T+2)}")
            a(f"v_perm_b32 {v(T)}, {v(T+2)}, {v(T+3)}, {s(S_C0+5)}")
            a(f"v_and_b32 {v(T+1)}, {s(S_C0+1)}, {v(T+2)}")
            a(f"v_sub_f32 {v(T+1)}, {v(T+2)}, {v(T+1)}")
            a(f"v_lshrrev_b32 {v(T+1)}, 16, {v(T+1)}")
            a(f"v_mov_b32 {v(T+2)}, 0")
            a(f"v_mov_b32 {v(T+3)}, 0")
            a(f"v_mov_b32 {v(T+20)}, 0x3f803f80")
            a(f"v_mov_b32 {v(T+21)}, 0x3f803f80")
            a(f"v_mov_b32 {v(T+22)}, 0")
            a(f"v_mov_b32 {v(T+23)}, 0")
            a(f"v_mfma_f32_32x32x16_bf16 {v(T+4,16)}, {v(T,4)}, {v(T+20,4)}, 0")
            self.wside(CS[1], self.bias[0])
            self.mf(self.ACC[1], self.WSd, X, True)
            a(f"v_bfe_u32 {v(self.vo)}, v0, 4, 1")
            a(f"v_lshlrev_b32 {v(self.vo)}, 16, {v(self.vo)}")
            a(f"v_lshrrev_b32 {v(T)}, 5, v0")
            a(f"v_lshl_add_u32 {v(self.vo)}, {v(T)}, 8, {v(self.vo)}")
            a(f"v_and_b32 {v(T)}, 15, v0")
            a(f"v_lshl_add_u32 {v(self.vo)}, {v(T)}, 4, {v(self.vo)}")
            a(f"s_add_u32 {s(S_T0)}, {s(S_T0)}, {hx(WS_VF)}")
            acc = self.ACC[0]
            for m in range(2):
                for i in range(8): a(f"v_mul_f32 {v(acc+8*m+i)}, {v(acc+8*m+i)}, {v(T+4+8*m+i)}")
                o = T if m == 0 else T + 20
                for p in range(4): a(f"v_cvt_pk_bf16_f32 {v(o+p)}, {v(acc+8*m+2*p)}, {v(acc+8*m+2*p+1)}")
                a(f"buffer_store_dwordx4 {v(o,4)}, {v(self.vo)}, {s(S_WS,4)}, {s(S_T0)} offen offset:{m*512} {SC_ST}")
                vm.add("qkv")
            a(f"v_lshlrev_b32 {v(self.vo)}, 4, v0")
        stamp(a, "qkv")
        a(f"s_mul_i32 {s(S_T0)}, {s(S_T0+4)}, {112*1024}")
        a(f"s_add_u32 {s(S_T0)}, {s(S_T0)}, {hx(WS_HF)}")
        for i in range(2):
            a(f"s_lshl_b32 {s(S_K0+2+i)}, {s(S_K0+2+i)}, 5")
            a(f"s_add_u32 {s(S_K0+2+i)}, {s(S_K0+2+i)}, {s(S_T0)}")
        self.relayout_issue()
        vm.wait(9)
        a("s_barrier")
        def sig1():
            vm.wait("qkv")
            a(f"v_mov_b32 {v(self.u0)}, {LDS_CNT}")
            a(f"v_mov_b32 {v(self.u1)}, 1")
            a("s_mov_b64 exec, 1")
            a(f"ds_add_rtn_u32 {v(self.u1)}, {v(self.u0)}, {v(self.u1)}")
            lg.add("cnt")
            a("s_mov_b64 exec, -1")
        def sig2():
            lg.wait("cnt")
            L = a.newlabel("L_sig")
            a(f"v_readfirstlane_b32 {s(S_T0)}, {v(self.u1)}")
            a(f"s_lshl_b32 {s(S_T0+1)}, {s(S_U)}, 7")
            a(f"s_lshl_b32 {s(S_T0+3)}, {s(S_RB)}, 3")
            a(f"s_add_u32 {s(S_T0+1)}, {s(S_T0+1)}, {s(S_T0+3)}")
            a(f"s_add_u32 {s(S_T0+1)}, {s(S_T0+1)}, {hx(FL1 + 4*typ)}")
            a(f"s_cmp_lg_u32 {s(S_T0)}, 7")
            a(f"s_cbranch_scc1 {L}")
            flag_store(a, self.u0, S_T0 + 1)
            a.label(L)
        fill = Filler(self.gelu(self.ACC[1], S_K0 + 2)) if typ == 1 else None
        self.second_tile(self.ACC[0], self.wa, lambda c, u: (3 + (c >> 2)) * SLOT + (c & 3) * 8192 + u * 512,
                         lg, vm, CS[0], fill, {8: sig1, 11: sig2})
        stamp(a, "t2")
        self.relayout_finish()
        if typ == 0: a("s_waitcnt vmcnt(2)")
        a(f"s_lshl_b32 {s(S_KV+1)}, {s(S_XCD)}, 7")
        a(f"s_add_u32 {s(S_KV+1)}, {s(S_KV+1)}, {hx(FL1)}")
        Lp = a.newlabel("L_np1")
        a(f"s_cmp_eq_u32 {s(S_SLOT)}, 0")
        a(f"s_cbranch_scc1 {Lp}")
        poll_issue(a, T, S_KV + 1, False)
        a.label(Lp)
        self.cs_put(CS[0], LDS_SCR)
        a("s_barrier")
        self.cs_get(CS[0])
        self.wside(CS[0], self.bias[typ])
        self.mf(self.ACC[0], self.WSd, X, True)
        L1 = a.newlabel("L_slot1"); Lj = a.newlabel("L_p1join")
        a(f"s_cmp_lg_u32 {s(S_SLOT)}, 0")
        a(f"s_cbranch_scc1 {L1}")
        if typ == 0:
            wh = self.xa
            a(f"v_lshrrev_b32 {v(T+1)}, 5, v0")
            a(f"v_bfe_u32 {v(T+2)}, v0, 2, 2")
            a(f"v_lshl_add_u32 {v(T+2)}, {v(T+1)}, 3, {v(T+2)}")
            a(f"v_lshlrev_b32 {v(T+2)}, 6, {v(T+2)}")
            a(f"v_bfe_u32 {v(T+3)}, v0, 4, 1")
            a(f"v_lshl_add_u32 {v(T+2)}, {v(T+3)}, 5, {v(T+2)}")
            a(f"v_and_b32 {v(T+3)}, 3, v0")
            a(f"v_lshl_add_u32 {v(T+2)}, {v(T+3)}, 3, {v(T+2)}")
            a(f"s_lshl_b32 {s(S_T0)}, {s(S_ROT)}, 10")
            a(f"v_add_u32 {v(wh[0])}, {s(S_T0)}, {v(T+2)}")
            for j in range(1, 4):
                a(f"v_xor_b32 {v(wh[j])}, {j<<10}, {v(wh[0])}")
            self.abase = 0
            lg.ops = []
            self.second_tile(self.ACC[1], wh, lambda c, u: c * 4096 + u * 256, lg, vm, CS[1],
                             Filler(self.gelu(self.ACC[0], S_K0 + 2)))
            self.cs_put(CS[1], LDS_SCR + 2048)
            a("s_barrier")
            self.cs_get(CS[1])
            self.wside(CS[1], self.bias[1])
            self.mf(self.ACC[1], self.WSd, X, True)
            a.extend(self.gelu(self.ACC[1], S_K0 + 3))
        else:
            a.extend(self.gelu(self.ACC[0], S_K0 + 3))
        a("s_waitcnt vmcnt(0)")
        a(f"s_branch {Lj}")
        a.label(L1)
        poll_wait(a, T, S_KV + 1, False)
        stamp(a, "fl1")
        a(f"s_lshl_b32 {s(S_T0+4)}, {s(S_RT)}, 11")
        a(f"s_lshl_b32 {s(S_KV)}, {s(S_E)}, 16")
        a(f"s_add_u32 {s(S_KV)}, {s(S_KV)}, {s(S_T0+4)}")
        a(f"s_add_u32 m0, {s(S_T0+4)}, {LDS_QST}")
        a(f"s_lshl_b32 {s(S_T0+2)}, {s(S_QB)}, 13")
        a(f"s_add_u32 {s(S_T0+2)}, {s(S_T0+2)}, {s(S_KV)}")
        for q in range(2):
            a(f"buffer_load_dwordx4 {v(self.vo)}, {s(S_WS,4)}, {s(S_T0+2)} offen" + (" offset:1024" if q else "") + f" {SC_LD} lds")
        self.kv_dma([(m, c) for c in range(3) for m in "KV"])
        a.extend(self.gelu(self.ACC[0], S_K0 + 2 + typ))
        self.kv_dma([("K", 3), ("V", 3), ("K", 4), ("V", 4), ("K", 5), ("V", 5), ("K", 6), ("K", 7)])
        if typ == 0: a("s_barrier")
        a.label(Lj)

    def relayout_issue(self):
        a = self.a; T = self.T
        Lrl = a.newlabel("L_rl")
        a(f"s_lshl_b32 {s(S_T0)}, {s(S_W)}, 8")
        a(f"s_add_u32 {s(S_ITEM)}, {s(S_T0)}, s2")
        a(f"s_cmp_ge_u32 {s(S_ITEM)}, 1152")
        a(f"s_cbranch_scc1 {Lrl}")
        a(f"v_lshrrev_b32 {v(self.u0)}, 3, v0")
        a(f"v_and_b32 {v(self.u1)}, 7, v0")
        a(f"v_bfe_u32 {v(self.vx0)}, v0, 4, 1")
        a(f"v_lshlrev_b32 {v(self.vx0)}, 2, {v(self.vx0)}")
        a(f"v_xor_b32 {v(self.u1)}, {v(self.u1)}, {v(self.vx0)}")
        a(f"v_lshlrev_b32 {v(self.u1)}, 4, {v(self.u1)}")
        a(f"v_lshl_add_u32 {v(self.u0)}, {v(self.u0)}, 10, {v(self.u1)}")
        a(f"v_add_u32 {v(self.u1)}, {8192-1024}, {v(self.u0)}")
        a(f"s_add_u32 m0, {s(S_XB)}, {SLOT}")
        Lwo = a.newlabel("L_wo")
        a(f"s_and_b32 {s(S_T0+1)}, {s(S_ITEM)}, 7")
        a(f"s_lshl_b32 {s(S_T0+1)}, {s(S_T0+1)}, 7")
        a(f"s_cmp_ge_u32 {s(S_ITEM)}, 896")
        a(f"s_cbranch_scc1 {Lwo}")
        a(f"s_lshr_b32 {s(S_T0)}, {s(S_ITEM)}, 3")
        a(f"s_lshl_b32 {s(S_T0)}, {s(S_T0)}, 14")
        a(f"s_add_u32 {s(S_T0)}, {s(S_T0)}, {s(S_T0+1)}")
        a(f"buffer_load_dwordx4 {v(self.u0)}, {s(S_W2,4)}, {s(S_T0)} offen lds")
        a(f"buffer_load_dwordx4 {v(self.u1)}, {s(S_W2,4)}, {s(S_T0)} offen offset:1024 lds")
        a(f"s_branch {Lrl}")
        a.label(Lwo)
        a(f"s_sub_u32 {s(S_T0)}, {s(S_ITEM)}, 896")
        a(f"s_lshr_b32 {s(S_T0)}, {s(S_T0)}, 3")
        a(f"s_lshl_b32 {s(S_T0)}, {s(S_T0)}, 14")
        a(f"s_add_u32 {s(S_T0)}, {s(S_T0)}, {s(S_T0+1)}")
        a(f"buffer_load_dwordx4 {v(self.u0)}, {s(S_WO,4)}, {s(S_T0)} offen lds")
        a(f"buffer_load_dwordx4 {v(self.u1)}, {s(S_WO,4)}, {s(S_T0)} offen offset:1024 lds")
        a.label(Lrl)

    def relayout_finish(self):
        a = self.a; W = self.WF; T = self.XF
        L = a.newlabel("L_rlf")
        u0, u1, t = self.u0, self.u1, self.vx0
        a(f"s_cmp_ge_u32 {s(S_ITEM)}, 1152")
        a(f"s_cbranch_scc1 {L}")
        a(f"v_lshrrev_b32 {v(u0)}, 5, v0")
        a(f"v_bfe_u32 {v(u1)}, v0, 2, 2")
        a(f"v_lshl_add_u32 {v(u0)}, {v(u0)}, 2, {v(u1)}")
        a(f"v_lshrrev_b32 {v(u1)}, 1, {v(u1)}")
        a(f"v_lshlrev_b32 {v(u1)}, 6, {v(u1)}")
        a(f"v_lshl_add_u32 {v(u0)}, {v(u0)}, 7, {v(u1)}")
        a(f"v_bfe_u32 {v(u1)}, v0, 4, 1")
        a(f"v_lshl_add_u32 {v(u0)}, {v(u1)}, 5, {v(u0)}")
        a(f"v_and_b32 {v(u1)}, 3, v0")
        a(f"v_lshl_add_u32 {v(u0)}, {v(u1)}, 3, {v(u0)}")
        a(f"v_add_u32 {v(u0)}, {s(S_XB)}, {v(u0)}")
        a(f"v_xor_b32 {v(u1)}, 64, {v(u0)}")
        a("s_waitcnt vmcnt(0)")
        for ct in range(2):
            for u in range(2):
                a(f"ds_read_b64_tr_b16 {v(W[ct][0]+2*u,2)}, {v((u0,u1)[ct])} offset:{SLOT+u*1024}")
        a(f"s_lshl_b32 {s(S_T0)}, {s(S_ITEM)}, 11")
        a(f"s_add_u32 {s(S_T0+1)}, {s(S_T0)}, {hx(WS_WOF - 896*2048)}")
        a(f"s_add_u32 {s(S_T0)}, {s(S_T0)}, {hx(WS_W2F)}")
        a(f"s_cmp_ge_u32 {s(S_ITEM)}, 896")
        a(f"s_cselect_b32 {s(S_T0)}, {s(S_T0+1)}, {s(S_T0)}")
        a("s_waitcnt lgkmcnt(0)")
        for ct in range(2):
            a(f"buffer_store_dwordx4 {v(W[ct][0],4)}, {v(self.vo)}, {s(S_WS,4)}, {s(S_T0)} offen offset:{ct*1024} {SC_ST}")
        a.label(L)

def phase1(a):
    p = P1(a)
    p.setup()
    LB = a.newlabel("L_typeB"); LE = a.newlabel("L_p1end")
    a(f"s_bitcmp1_b32 {s(S_IDX)}, 3")
    a(f"s_cbranch_scc1 {LB}")
    p.body(0)
    a(f"s_branch {LE}")
    a.label(LB)
    p.body(1)
    a.label(LE)

class P2:
    def __init__(self, a):
        self.a = a
        R = self.R = Regs(2, 256)
        self.S = [R.alloc(16, 4), R.alloc(16, 4)]
        self.Cm = R.alloc(16, 4)
        self.O = R.alloc(16, 4)
        self.G = R.alloc(64, 4)
        self.WO = R.alloc(64, 4)
        self.W2 = R.alloc(16, 4)
        self.H = [R.alloc(4, 4), R.alloc(4, 4)]
        self.Qf = R.alloc(4, 4); self.Kf = R.alloc(4, 4)
        self.V0 = R.alloc(4, 4); self.V1 = R.alloc(4, 4)
        self.X = R.alloc(4, 4); self.B2 = R.alloc(4, 4)
        self.T = R.alloc(4, 4)
        self.l16 = R.alloc(); self.ka = R.alloc(); self.va = R.alloc(); self.vinc = R.alloc(); self.idx = R.alloc()
        self.vrow = R.alloc()

    def setup(self):
        a = self.a; T = self.T
        a(f"v_lshlrev_b32 {v(self.l16)}, 4, v0")
        a(f"s_lshl_b32 {s(S_T0)}, {s(S_W)}, 10")
        a(f"v_add_u32 {v(self.ka)}, {s(S_T0)}, {v(self.l16)}")
        a(f"v_and_b32 {v(T+1)}, 11, v0")
        a(f"v_cmp_eq_u32 vcc, 0, {v(T+1)}")
        a(f"v_mov_b32 {v(T+1)}, 0x3f803f80")
        a(f"v_cndmask_b32 {v(T)}, 0, {v(T+1)}, vcc")
        for i in range(1, 4): a(f"v_mov_b32 {v(T+i)}, {v(T)}")
        a(f"ds_write_b128 {v(self.ka)}, {v(T,4)} offset:{LDS_ONES}")
        a(f"v_add_u32 {v(self.Qf)}, {LDS_QST}, {v(self.ka)}")
        a(f"v_add_u32 {v(self.ka)}, {LDS_K}, {v(self.l16)}")
        a(f"v_mov_b32 {v(self.idx)}, 0xdddddddd")
        a(f"v_and_b32 {v(T)}, 31, v0")
        a(f"v_lshrrev_b32 {v(T+1)}, 5, v0")
        a(f"v_lshlrev_b32 {v(T+1)}, 8, {v(T+1)}")
        a(f"v_lshl_add_u32 {v(T+1)}, {v(T)}, 4, {v(T+1)}")
        a(f"v_add_u32 {v(T+1)}, {LDS_V}, {v(T+1)}")
        a(f"v_subrev_u32 {v(T+2)}, 20, {v(T)}")
        a(f"v_cmp_gt_u32 vcc, 8, {v(T+2)}")
        a(f"v_mov_b32 {v(T+2)}, {LDS_ONES}")
        a(f"v_mov_b32 {v(T+3)}, {LDS_ONES+64}")
        a(f"v_cndmask_b32 {v(T+2)}, {v(T+2)}, {v(T+3)}, vcc")
        a(f"v_and_b32 {v(T+3)}, 27, {v(T)}")
        a(f"v_cmp_eq_u32 vcc, 16, {v(T+3)}")
        a(f"v_add_u32 {v(T+3)}, 16, {v(T+2)}")
        a(f"v_cndmask_b32 {v(T+2)}, {v(T+3)}, {v(T+2)}, vcc")
        a(f"v_cmp_gt_u32 vcc, 16, {v(T)}")
        a(f"v_mov_b32 {v(T+3)}, 4096")
        a(f"v_cndmask_b32 {v(self.va)}, {v(T+2)}, {v(T+1)}, vcc")
        a(f"v_cndmask_b32 {v(self.vinc)}, 0, {v(T+3)}, vcc")
        for i in range(16): a(f"v_mov_b32 {v(self.O+i)}, 0")

    def setup2(self):
        L = []; a = L.append; T = self.X
        a(f"v_lshrrev_b32 {v(T)}, 4, v0")
        a(f"v_lshlrev_b32 {v(T)}, 10, {v(T)}")
        a(f"v_and_b32 {v(T+1)}, 15, v0")
        a(f"v_lshl_add_u32 {v(T)}, {v(T+1)}, 4, {v(T)}")
        a(f"s_lshl_b32 {s(S_T0)}, {s(S_R)}, 15")
        a(f"s_lshl_b32 {s(S_T0+1)}, {s(S_W)}, 12")
        a(f"s_add_u32 {s(S_T0)}, {s(S_T0)}, {s(S_T0+1)}")
        a(f"s_lshl_b32 {s(S_T0+1)}, {s(S_CG)}, 8")
        a(f"s_add_u32 {s(S_T0)}, {s(S_T0)}, {s(S_T0+1)}")
        a(f"v_add_u32 {v(self.vrow)}, {s(S_T0)}, {v(T)}")
        a(f"s_mul_i32 {s(S_K0)}, {s(S_R)}, {112*1024}")
        a(f"s_mul_i32 {s(S_T0)}, {s(S_W)}, {14*1024}")
        a(f"s_add_u32 {s(S_K0)}, {s(S_K0)}, {s(S_T0)}")
        a(f"s_add_u32 {s(S_K0)}, {s(S_K0)}, {hx(WS_HF)}")
        a(f"s_mul_i32 {s(S_K0+1)}, {s(S_W)}, {14*16384}")
        a(f"s_lshl_b32 {s(S_T0)}, {s(S_CG)}, 12")
        a(f"s_add_u32 {s(S_K0+1)}, {s(S_K0+1)}, {s(S_T0)}")
        a(f"s_add_u32 {s(S_K0+1)}, {s(S_K0+1)}, {hx(WS_W2F)}")
        a(f"s_lshl_b32 {s(S_K0+2)}, {s(S_SLOT)}, 18")
        a(f"s_add_u32 {s(S_K0+2)}, {s(S_K0+2)}, {s(S_T0)}")
        a(f"s_lshl_b32 {s(S_T0)}, {s(S_RT)}, 10")
        a(f"s_add_u32 {s(S_K0+2)}, {s(S_K0+2)}, {s(S_T0)}")
        a(f"s_add_u32 {s(S_K0+2)}, {s(S_K0+2)}, {hx(WS_WOF)}")
        a(f"s_mov_b32 {s(S_C0)}, {hx(fbits(2.0**64))}")
        a(f"s_mov_b32 {s(S_C0+1)}, {hx(fbits(2.0**120))}")
        return L

    def smf(self, vf, p):
        self.a(f"v_smfmac_f32_32x32x32_bf16 {v(self.O,16)}, {v(vf,4)}, {v(p,8)}, {v(self.idx)}")

    def tile(self, g, first=False, gwork=None, left=99):
        a = self.a
        c = self.S[g & 1]; n = self.S[(g & 1) ^ 1]
        E = lambda i: a(f"v_exp_f32 {v(c+i)}, {v(c+i)}")
        E(0); E(1)
        if not first:
            a(f"s_waitcnt lgkmcnt({2 if left >= 1 else 1})")
            self.smf(self.V1, n + 8)
        a(f"ds_read_b128 {v(self.V1,4)}, {v(self.va)} offset:{(2*g+1)*512}")
        for i in range(2, 6): E(i)
        if left >= 1:
            a("s_waitcnt lgkmcnt(2)")
            a(f"v_mfma_f32_32x32x16_bf16 {v(n,16)}, {v(self.Kf,4)}, {v(self.Qf,4)}, {v(self.Cm,16)}")
        if left >= 2: a(f"ds_read_b128 {v(self.Kf,4)}, {v(self.ka)} offset:{(g+2)*1024}")
        for i in range(6, 10): E(i)
        a(f"s_waitcnt lgkmcnt({2 if left >= 2 else 1})")
        self.smf(self.V0, c)
        if left >= 1: a(f"ds_read_b128 {v(self.V0,4)}, {v(self.va)} offset:{(2*g+2)*512}")
        for i in range(10, 14): E(i)
        if gwork: gwork()
        E(14); E(15)
        if g == 3 and left >= 1:
            a(f"v_add_u32 {v(self.ka)}, 4096, {v(self.ka)}")
            a(f"v_add_u32 {v(self.va)}, {v(self.vinc)}, {v(self.va)}")

    def gload_w(self, ct):
        self.a(f"buffer_load_dwordx4 {v(self.W2+4*ct,4)}, {v(self.l16)}, {s(S_WS,4)}, {s(S_K0+1)} offen offset:{ct*1024} {SC_LD}")
        if ct == 3: self.a(f"s_add_u32 {s(S_K0+1)}, {s(S_K0+1)}, 16384")
    def gload_h(self, b):
        self.a(f"buffer_load_dwordx4 {v(self.H[b],4)}, {v(self.l16)}, {s(S_WS,4)}, {s(S_K0)} offen {SC_LD}")
        self.a(f"s_add_u32 {s(S_K0)}, {s(S_K0)}, 1024")
    def wo_load(self, i):
        self.a(f"buffer_load_dwordx4 {v(self.WO+4*i,4)}, {v(self.l16)}, {s(S_WS,4)}, {s(S_K0+2)} offen {SC_LD}")
        self.a(f"s_add_u32 {s(S_K0+2)}, {s(S_K0+2)}, 16384")
    def gmf(self, n):
        ct = n & 3; acc = self.G + 16 * ct
        self.a(f"v_mfma_f32_32x32x16_bf16 {v(acc,16)}, {v(self.W2+4*ct,4)}, {v(self.H[(n>>2)&1],4)}, " + ("0" if n < 4 else v(acc, 16)))

    def rowmax(self, src, dst):
        for i in range(8): self.a(f"v_max3_f32 {v(dst)}, {v(src+2*i)}, {v(src+2*i+1)}, {v(dst)}")

    def set_cm(self, m):
        a = self.a; T = self.T
        a(f"v_mov_b32 {v(T+1)}, {v(m)}")
        a(f"v_permlane32_swap_b32 {v(m)}, {v(T+1)}")
        a(f"v_max_f32 {v(m)}, {v(m)}, {v(T+1)}")
        a(f"v_sub_f32 {v(self.Cm)}, 0, {v(m)}")
        for i in range(1, 16): a(f"v_mov_b32 {v(self.Cm+i)}, {v(self.Cm)}")

    def attention(self):
        a = self.a; T = self.T
        a("s_waitcnt vmcnt(16) lgkmcnt(0)")
        a("s_barrier")
        stamp(a, "b0")
        a(f"ds_read_b128 {v(self.Qf,4)}, {v(self.Qf)}")
        a(f"ds_read_b128 {v(self.Kf,4)}, {v(self.ka)}")
        L = a.newlabel("L_nf2")
        a(f"s_cmp_lg_u32 {s(S_W)}, 0")
        a(f"s_cbranch_scc1 {L}")
        a(f"s_lshl_b32 {s(S_T0)}, s2, 2")
        a(f"s_add_u32 {s(S_T0)}, {s(S_T0)}, {hx(FL2)}")
        flag_store(a, T, S_T0)
        a.label(L)
        a(f"v_mov_b32 {v(T)}, 0xff800000")
        a("s_waitcnt lgkmcnt(0)")
        a(f"v_mfma_f32_32x32x16_bf16 {v(self.S[1],16)}, {v(self.Kf,4)}, {v(self.Qf,4)}, 0")
        a.extend(self.setup2())
        self.rowmax(self.S[1], T)
        self.set_cm(T)
        a(f"v_mfma_f32_32x32x16_bf16 {v(self.S[0],16)}, {v(self.Kf,4)}, {v(self.Qf,4)}, {v(self.Cm,16)}")
        a(f"ds_read_b128 {v(self.Kf,4)}, {v(self.ka)} offset:1024")
        a(f"ds_read_b128 {v(self.V0,4)}, {v(self.va)}")
        def pre2():
            L = a.newlabel("L_np2a")
            a(f"s_mov_b32 {s(S_KV)}, {hx(FL2)}")
            a(f"s_cmp_lg_u32 {s(S_W)}, 0")
            a(f"s_cbranch_scc1 {L}")
            poll_issue(a, self.WO, S_KV, True)
            a.label(L)
        for t in range(8): self.tile(t & 3, first=(t == 0), gwork=(pre2 if t == 5 else None))
        L = a.newlabel("L_np2")
        a(f"s_cmp_lg_u32 {s(S_W)}, 0")
        a(f"s_cbranch_scc1 {L}")
        poll_wait(a, self.WO, S_KV, True)
        a(f"s_cmp_lg_u32 s2, 0")
        a(f"s_cbranch_scc1 {L}")
        a(f"s_mov_b32 {s(S_T0)}, {hx(FL_EPOCH)}")
        flag_store(a, self.WO, S_T0)
        a.label(L)
        a("s_waitcnt vmcnt(0)")
        a("s_barrier")
        stamp(a, "b1")
        a(f"s_lshl_b32 {s(S_T0)}, {s(S_E)}, 16")
        a(f"s_add_u32 {s(S_T0)}, {s(S_T0)}, {s(S_WB)}")
        for c in (6, 7):
            a(f"s_add_u32 m0, {s(S_WB)}, {LDS_V + c*8192}")
            a(f"s_add_u32 {s(S_T0+1)}, {s(S_T0)}, {hx(WS_VF + c*8192)}")
            a(f"buffer_load_dwordx4 {v(self.l16)}, {s(S_WS,4)}, {s(S_T0+1)} offen {SC_LD} lds")
        self.gload_h(0)
        for ct in range(4): self.gload_w(ct)
        self.gload_h(1)
        vm = None
        def gw(n, extra=None):
            def f():
                later = n >= 52
                if vm is None: a("s_waitcnt vmcnt(4)")
                else: vm.wait(("g", n))
                self.gmf(n)
                if n < 52:
                    self.gload_w(n & 3)
                    if vm is not None: vm.add(("g", n + 4))
                if (n & 3) == 3 and n < 48:
                    self.gload_h((n >> 2) & 1)
                    if vm is not None: vm.add("h")
                if extra: extra()
            return f
        for t in range(8, 16): self.tile(t & 3, gwork=(gw(t - 10) if t >= 10 else None))
        a("s_barrier")
        a(f"s_mov_b32 {s(S_LOOP)}, 4")
        Ll = a.newlabel("L_attn")
        a(".p2align 6")
        a.label(Ll)
        for t in range(16, 24): self.tile(t & 3, gwork=gw(t - 10))
        a(f"s_sub_u32 {s(S_LOOP)}, {s(S_LOOP)}, 1")
        a(f"s_cmp_lg_u32 {s(S_LOOP)}, 0")
        a(f"s_cbranch_scc1 {Ll}")
        vm = Q(a, "vmcnt", 63)
        for tag in [("g", 38), ("g", 39), "h", ("g", 40), ("g", 41)]: vm.add(tag)
        wo = [0]
        def ex(k):
            def f():
                for _ in range(k):
                    if wo[0] < 16:
                        self.wo_load(wo[0]); wo[0] += 1; vm.add("wo")
                    elif wo[0] == 16:
                        self.xb_load(); wo[0] += 1; vm.add("wo"); vm.add("wo")
            return f
        for t in range(48, 64): self.tile(t & 3, gwork=gw(t - 10, ex(1 if t < 60 else 2)), left=63 - t)
        a("s_waitcnt lgkmcnt(0)")
        self.smf(self.V1, self.S[1] + 8)
        gw(54)(); gw(55)()
        assert wo[0] == 17
        stamp(a, "attn")
        Lok = a.newlabel("L_ok")
        O = self.O
        a(f"v_max3_f32 {v(T)}, abs({v(O)}), abs({v(O+1)}), {v(O+8)}")
        for i in range(1, 4): a(f"v_max3_f32 {v(T)}, abs({v(O+2*i)}), abs({v(O+2*i+1)}), {v(T)}")
        a(f"v_cmp_nle_f32 vcc, {v(O+8)}, {s(S_C0)}")
        a(f"v_cmp_nle_f32 {s(S_T0,2)}, {v(T)}, {s(S_C0+1)}")
        a(f"s_or_b64 vcc, vcc, {s(S_T0,2)}")
        a(f"s_cbranch_vccnz L_fallback")
        a.label("L_fbret")
        a(f"v_rcp_f32 {v(T)}, {v(O+8)}")
        a(f"s_lshl_b32 {s(S_T0)}, {s(S_QB)}, 3")
        a(f"s_add_u32 {s(S_T0)}, {s(S_T0)}, {s(S_W)}")
        a(f"s_lshl_b32 {s(S_T0)}, {s(S_T0)}, 5")
        a(f"s_add_u32 {s(S_T0)}, {s(S_T0)}, {s(S_E)}")
        a(f"s_lshl_b32 {s(S_T0)}, {s(S_T0)}, 10")
        a(f"s_add_u32 {s(S_T0)}, {s(S_T0)}, {hx(WS_OF)}")
        for i in range(8): a(f"v_mul_f32 {v(O+i)}, {v(O+i)}, {v(T)}")
        for p in range(4): a(f"v_cvt_pk_bf16_f32 {v(O+8+p)}, {v(O+2*p)}, {v(O+2*p+1)}")
        a(f"buffer_store_dwordx4 {v(O+8,4)}, {v(self.l16)}, {s(S_WS,4)}, {s(S_T0)} offen {SC_ST}")

    def fallback(self):
        a = self.a; T = self.T
        c = self.S[0]
        a.label("L_fallback")
        a(f"v_add_u32 {v(self.ka)}, {LDS_K}, {v(self.l16)}")
        a(f"v_mov_b32 {v(T)}, 0xff800000")
        a(f"s_mov_b32 {s(S_LOOP)}, 64")
        L1 = a.newlabel("L_fb1")
        a.label(L1)
        a(f"ds_read_b128 {v(self.Kf,4)}, {v(self.ka)}")
        a(f"v_add_u32 {v(self.ka)}, 1024, {v(self.ka)}")
        a("s_waitcnt lgkmcnt(0)")
        a(f"v_mfma_f32_32x32x16_bf16 {v(c,16)}, {v(self.Kf,4)}, {v(self.Qf,4)}, 0")
        self.rowmax(c, T)
        a(f"s_sub_u32 {s(S_LOOP)}, {s(S_LOOP)}, 1")
        a(f"s_cmp_lg_u32 {s(S_LOOP)}, 0")
        a(f"s_cbranch_scc1 {L1}")
        self.set_cm(T)
        for i in range(16): a(f"v_mov_b32 {v(self.O+i)}, 0")
        a(f"v_add_u32 {v(self.ka)}, {LDS_K}, {v(self.l16)}")
        a(f"v_mul_u32_u24 {v(T)}, 15, {v(self.vinc)}")
        a(f"v_sub_u32 {v(self.va)}, {v(self.va)}, {v(T)}")
        a(f"v_lshrrev_b32 {v(T)}, 2, {v(self.vinc)}")
        a(f"s_mov_b32 {s(S_LOOP)}, 64")
        L2 = a.newlabel("L_fb2")
        a.label(L2)
        a(f"ds_read_b128 {v(self.Kf,4)}, {v(self.ka)}")
        a(f"ds_read_b128 {v(self.V0,4)}, {v(self.va)}")
        a(f"ds_read_b128 {v(self.V1,4)}, {v(self.va)} offset:512")
        a(f"v_add_u32 {v(self.ka)}, 1024, {v(self.ka)}")
        a(f"v_add_u32 {v(self.va)}, {v(T)}, {v(self.va)}")
        a("s_waitcnt lgkmcnt(0)")
        a(f"v_mfma_f32_32x32x16_bf16 {v(c,16)}, {v(self.Kf,4)}, {v(self.Qf,4)}, {v(self.Cm,16)}")
        for i in range(16): a(f"v_exp_f32 {v(c+i)}, {v(c+i)}")
        self.smf(self.V0, c)
        self.smf(self.V1, c + 8)
        a(f"s_sub_u32 {s(S_LOOP)}, {s(S_LOOP)}, 1")
        a(f"s_cmp_lg_u32 {s(S_LOOP)}, 0")
        a(f"s_cbranch_scc1 {L2}")
        a("s_branch L_fbret")

    def tile_addr(self, A, lds_base_s):
        a = self.a
        a(f"v_and_b32 {v(A)}, 31, v0")
        a(f"v_lshrrev_b32 {v(A+1)}, 5, v0")
        a(f"v_and_b32 {v(A+2)}, 7, v0")
        a(f"v_xor_b32 {v(A+1)}, {v(A+1)}, {v(A+2)}")
        a(f"v_lshlrev_b32 {v(A+1)}, 4, {v(A+1)}")
        a(f"v_lshl_add_u32 {v(A)}, {v(A)}, 9, {v(A+1)}")
        a(f"v_add_u32 {v(A)}, {s(lds_base_s)}, {v(A)}")
        for g in range(1, 4): a(f"v_xor_b32 {v(A+g)}, {g<<5}, {v(A)}")
    def tile_write(self, A, acc, nct):
        for ct in range(nct):
            for g in range(4):
                self.a(f"ds_write_b128 {v(A+g)}, {v(acc+16*ct+4*g,4)} offset:{ct*128}")

    def rm_addr(self, A):
        a = self.a
        a(f"v_lshrrev_b32 {v(A)}, 4, v0")
        a(f"s_lshl_b32 {s(S_T0)}, {s(S_W)}, 2")
        a(f"v_add_u32 {v(A)}, {s(S_T0)}, {v(A)}")
        a(f"v_and_b32 {v(A+1)}, 15, v0")
        a(f"v_lshlrev_b32 {v(A+1)}, 1, {v(A+1)}")
        a(f"v_and_b32 {v(A+2)}, 7, {v(A)}")
        a(f"v_xor_b32 {v(A+1)}, {v(A+1)}, {v(A+2)}")
        a(f"v_lshlrev_b32 {v(A+1)}, 4, {v(A+1)}")
        a(f"v_lshl_add_u32 {v(A)}, {v(A)}, 9, {v(A+1)}")
        a(f"v_xor_b32 {v(A+1)}, 16, {v(A)}")

    def xb_load(self):
        a = self.a; T = self.T
        a(f"buffer_load_dwordx4 {v(self.X,4)}, {v(self.vrow)}, {s(S_X,4)}, 0 offen")
        a(f"v_and_b32 {v(T)}, 0x3ff, {v(self.vrow)}")
        a(f"buffer_load_dwordx4 {v(self.B2,4)}, {v(T)}, {s(S_B2,4)}, 0 offen")

    def tail(self):
        a = self.a; T = self.T
        WA = self.S[0]; A = self.S[0] + 4; G = self.G; M = self.Cm
        a(f"s_lshl_b32 {s(S_T0+1)}, {s(S_W)}, 14")
        self.tile_addr(WA, S_T0 + 1)
        self.rm_addr(A)
        a(f"v_add_u32 {v(A+2)}, 65536, {v(A)}")
        a(f"v_add_u32 {v(A+3)}, 65536, {v(A+1)}")
        a("s_waitcnt vmcnt(0)")
        a("s_barrier")
        L = a.newlabel("L_nf3")
        a(f"s_lshl_b32 {s(S_KV)}, {s(S_QB)}, 7")
        a(f"s_add_u32 {s(S_KV)}, {s(S_KV)}, {hx(FL3)}")
        a(f"s_cmp_lg_u32 {s(S_W)}, 0")
        a(f"s_cbranch_scc1 {L}")
        a(f"s_lshl_b32 {s(S_T0)}, {s(S_E)}, 2")
        a(f"s_add_u32 {s(S_T0)}, {s(S_T0)}, {s(S_KV)}")
        flag_store(a, T, S_T0)
        a.label(L)
        stamp(a, "opub")
        self.tile_write(WA, G, 4)
        for i in range(4):
            a(f"v_lshlrev_b32 {v(M+2*i)}, 16, {v(self.B2+i)}")
            a(f"v_and_b32 {v(M+2*i+1)}, 0xffff0000, {v(self.B2+i)}")
        a("s_waitcnt lgkmcnt(0)")
        a("s_barrier")
        for p in range(8):
            for jb in range(2):
                a(f"ds_read_b128 {v(G+8*p+4*jb,4)}, {v(A+jb+2*(p>>2))} offset:{(p&3)*16384}")
        for p in range(8):
            a(f"s_waitcnt lgkmcnt({14-2*p})")
            for i in range(4):
                a(f"v_pk_add_f32 {v(M+2*i,2)}, {v(M+2*i,2)}, {v(G+8*p+2*i,2)}")
        poll_issue(a, self.S[1], S_KV, False)
        a(f"s_mov_b32 {s(S_T0)}, {hx(fbits(-LOG2E))}")
        for i in range(8): a(f"v_mul_f32 {v(M+8+i)}, {s(S_T0)}, {v(M+i)}")
        for i in range(8): a(f"v_exp_f32 {v(M+8+i)}, {v(M+8+i)}")
        for i in range(8): a(f"v_add_f32 {v(M+8+i)}, 1.0, {v(M+8+i)}")
        for i in range(8): a(f"v_rcp_f32 {v(M+8+i)}, {v(M+8+i)}")
        for i in range(8): a(f"v_mul_f32 {v(M+i)}, {v(M+i)}, {v(M+8+i)}")
        for i in range(4):
            a(f"v_lshlrev_b32 {v(M+8+2*i)}, 16, {v(self.X+i)}")
            a(f"v_and_b32 {v(M+8+2*i+1)}, 0xffff0000, {v(self.X+i)}")
        a(f"s_lshl_b32 {s(S_T0+1)}, {s(S_SLOT)}, 14")
        a(f"s_lshl_b32 {s(S_T0)}, {s(S_RT)}, 7")
        a(f"s_add_u32 {s(S_T0+1)}, {s(S_T0+1)}, {s(S_T0)}")
        self.tile_addr(WA, S_T0 + 1)
        a(f"s_lshl_b32 {s(S_T0)}, {s(S_SLOT)}, 14")
        a(f"s_add_u32 {s(S_T0)}, {s(S_T0)}, {LDS_O}")
        a(f"v_add_u32 {v(T)}, {s(S_T0)}, {v(self.l16)}")
        a(f"s_lshl_b32 {s(S_T0)}, {s(S_R)}, 15")
        a(f"s_lshl_b32 {s(S_T0+1)}, {s(S_W)}, 12")
        a(f"s_add_u32 {s(S_T0)}, {s(S_T0)}, {s(S_T0+1)}")
        a(f"s_add_u32 {s(S_T0)}, {s(S_T0)}, {hx(WS_OF)}")
        a(f"s_add_u32 m0, {s(S_T0+1)}, {LDS_O}")
        stamp(a, "mred")
        poll_wait(a, self.S[1], S_KV, False)
        stamp(a, "fl3")
        for i in range(4):
            a(f"buffer_load_dwordx4 {v(self.l16)}, {s(S_WS,4)}, {s(S_T0)} offen" + (f" offset:{i*1024}" if i else "") + f" {SC_LD} lds")
        acc = self.O; F = self.G
        a("s_waitcnt vmcnt(0)")
        a("s_barrier")
        stamp(a, "oin")
        for i in range(16): a(f"ds_read_b128 {v(F+4*i,4)}, {v(T)} offset:{i*1024}")
        for i in range(16):
            a(f"s_waitcnt lgkmcnt({15-i})")
            a(f"v_mfma_f32_32x32x16_bf16 {v(acc,16)}, {v(self.WO+4*i,4)}, {v(F+4*i,4)}, " + ("0" if i == 0 else v(acc, 16)))
        self.tile_write(WA, acc, 1)
        a("s_waitcnt lgkmcnt(0)")
        a("s_barrier")
        for kh in range(2):
            for jb in range(2):
                a(f"ds_read_b128 {v(F+8*kh+4*jb,4)}, {v(A+jb)} offset:{kh*16384}")
        a("s_waitcnt lgkmcnt(0)")
        for i in range(4): a(f"v_pk_add_f32 {v(F+2*i,2)}, {v(F+2*i,2)}, {v(F+8+2*i,2)}")
        for i in range(4): a(f"v_pk_fma_f32 {v(F+2*i,2)}, {v(F+2*i,2)}, {v(M+2*i,2)}, {v(M+8+2*i,2)}")
        for i in range(4): a(f"v_cvt_pk_bf16_f32 {v(F+8+i)}, {v(F+2*i)}, {v(F+2*i+1)}")
        a(f"buffer_store_dwordx4 {v(F+8,4)}, {v(self.vrow)}, {s(S_OUT,4)}, 0 offen")

def build():
    a = Asm()
    prologue(a, "L_exit")
    phase1(a)
    stamp(a, "p1end")
    p = P2(a)
    p.setup()
    p.attention()
    p.tail()
    stamp(a, "end")
    stamps_flush(a)
    a.label("L_exit")
    a("s_endpgm")
    p.fallback()
    return a.L

def emit(path):
    hdr = open("cdna_kernels/" + NAME + ".s.ref").read().split("; Override launch")[0]
    L, n = fix_hazards(build())
    print(path, "instrs", len(L), "nops", n, file=sys.stderr)
    hdr += "; @launch grid=(256,1,1) block=(512,1,1) lds=163840\n"
    open(path, "w").write(hdr + ".amdgcn_target \"amdgcn-amd-amdhsa--gfx950\"\n" + kernel_text(NAME + "_kernel", L, 256))

if __name__ == "__main__":
    if len(sys.argv) > 2: STAMPS = sys.argv[2].split(",")
    emit(sys.argv[1] if len(sys.argv) > 1 else "fused.s")
```
